```python
import torch

def _softmax(x, axis=-1):
    return torch.softmax(x, dim=axis)
def _gelu(x):
    return torch.nn.functional.gelu(x, approximate="tanh")
def _silu(x):
    return torch.nn.functional.silu(x)
def _sigmoid(x):
    return torch.sigmoid(x)
def _layernorm(x, axis=-1, eps=1e-5):
    m = x.mean(dim=axis, keepdim=True)
    v = x.var(dim=axis, keepdim=True, unbiased=False)
    return (x - m) / torch.sqrt(v + eps)
def _scatter_add(tgt, idx, src, axis=0):
    return tgt.clone().index_add_(axis, idx, src)
def _segment_sum(src, seg, n):
    out = torch.zeros((n,) + src.shape[1:], dtype=src.dtype)
    return out.index_add_(0, seg, src)
def _pad(x, pw):
    flat = tuple(v for pair in reversed(pw) for v in pair)
    return torch.nn.functional.pad(x, flat)

kernel_name = 'sequential_preLN__spectral_fnet__dense_activation_squared_relu__prompt'

def setup_inputs():

    _w = (lambda a: (lambda t: t.to(torch.bfloat16) if t.is_floating_point() else t)(torch.as_tensor(a)))
    def _A_setup():
        B, S, D = 1, 2048, 640
        ns = torch.arange(S)[:, None] * torch.arange(S)[None, :]
        nd = torch.arange(D)[:, None] * torch.arange(D)[None, :]
        Ws_re = torch.cos(-2.0 * torch.pi * ns / S).to(float)
        Ws_im = torch.sin(-2.0 * torch.pi * ns / S).to(float)
        Wd_re = torch.cos(-2.0 * torch.pi * nd / D).to(float)
        Wd_im = torch.sin(-2.0 * torch.pi * nd / D).to(float)
        return {
            "x": _w((lambda *s: torch.randn(*s, dtype=torch.bfloat16) * 0.05)(B, S, D)),
            "dft_seq_re": _w(Ws_re),
            "dft_seq_im": _w(Ws_im),
            "dft_hid_re": _w(Wd_re),
            "dft_hid_im": _w(Wd_im),
        }
    _A_in = _A_setup()

    def _B_setup():
        B, S, D, F = 1, 2048, 640, 1728
        return {
            "x": _w((lambda *s: torch.randn(*s, dtype=torch.bfloat16) * 0.05)(B, S, D)),
            "w1": _w((lambda *s: torch.randn(*s, dtype=torch.bfloat16) * 0.2)(D, F)),
            "b1": _w((lambda *s: torch.randn(*s, dtype=torch.bfloat16) * 0.2)(F)),
            "w2": _w((lambda *s: torch.randn(*s, dtype=torch.bfloat16) * 0.2)(F, D)),
            "b2": _w((lambda *s: torch.randn(*s, dtype=torch.bfloat16) * 0.2)(D)),
        }
    _B_in = _B_setup()

    return {
        "A_x": _A_in["x"],
        "A_dft_seq_re": _A_in["dft_seq_re"],
        "A_dft_seq_im": _A_in["dft_seq_im"],
        "A_dft_hid_re": _A_in["dft_hid_re"],
        "A_dft_hid_im": _A_in["dft_hid_im"],
        "B_x": _B_in["x"],
        "B_w1": _B_in["w1"],
        "B_b1": _B_in["b1"],
        "B_w2": _B_in["w2"],
        "B_b2": _B_in["b2"],
    }

def reference(A_x, A_dft_seq_re, A_dft_seq_im, A_dft_hid_re, A_dft_hid_im, B_x, B_w1, B_b1, B_w2, B_b2):
    def _A_ref(x, dft_seq_re, dft_seq_im, dft_hid_re, dft_hid_im):
        a = torch.einsum("bsd,ed->bse", x, dft_hid_re)
        b = torch.einsum("bsd,ed->bse", x, dft_hid_im)
        y = torch.einsum("ts,bse->bte", dft_seq_re, a) - torch.einsum("ts,bse->bte", dft_seq_im, b)
        return y

    def _B_ref(x, w1, b1, w2, b2):
        h = torch.einsum("bsd,df->bsf", x, w1) + b1
        zero = torch.zeros_like(h)
        r = torch.where(h > zero, h, zero)
        h = r * r
        out = torch.einsum("bsf,fd->bsd", h, w2) + b2
        return out

    x = A_x
    h = x + _A_ref(_layernorm(x, axis=-1), A_dft_seq_re, A_dft_seq_im, A_dft_hid_re, A_dft_hid_im)
    h2 = h + _B_ref(_layernorm(h, axis=-1), B_w1, B_b1, B_w2, B_b2)
    return h2
```

```python
import re

TRANS = ('v_exp_f32', 'v_log_f32', 'v_rcp_f32', 'v_rsq_f32', 'v_sqrt_f32', 'v_sin_f32', 'v_cos_f32', 'v_rcp_iflag_f32')

def regs_of(tok):
    tok = tok.strip()
    if tok.startswith('-'):
        tok = tok[1:]
    m = re.fullmatch(r'abs\((.*)\)', tok)
    if m: tok = m.group(1)
    m = re.fullmatch(r'\|(.*)\|', tok)
    if m: tok = m.group(1)
    m = re.fullmatch(r'([vas])(\d+)', tok)
    if m: return {tok}
    m = re.fullmatch(r'([vas])\[(\d+):(\d+)\]', tok)
    if m: return {f'{m.group(1)}{i}' for i in range(int(m.group(2)), int(m.group(3)) + 1)}
    if tok in ('vcc', 'exec', 'm0', 'scc'): return {tok}
    if tok in ('vcc_lo', 'vcc_hi'): return {'vcc'}
    if tok in ('exec_lo', 'exec_hi'): return {'exec'}
    return set()

def split_ops(s):
    out, depth, cur = [], 0, ''
    for ch in s:
        if ch in '[(': depth += 1
        if ch in '])': depth -= 1
        if ch == ',' and depth == 0:
            out.append(cur.strip()); cur = ''
        else:
            cur += ch
    if cur.strip(): out.append(cur.strip())
    return out

class Ins:
    def __init__(self, text):
        self.text = text
        t = text.split(';')[0].strip()
        parts = t.split(None, 1)
        self.op = parts[0]
        rest = parts[1] if len(parts) > 1 else ''
        ops = split_ops(rest)
        self.mods = ''
        if ops:
            lp = ops[-1].split(None, 1)
            ops[-1] = lp[0]
            self.mods = lp[1] if len(lp) > 1 else ''
        self.ops = ops
        op = self.op
        R = lambda i: regs_of(ops[i]) if i < len(ops) else set()
        allr = lambda a: set().union(*[regs_of(o) for o in ops[a:]]) if len(ops) > a else set()
        self.kind = 'other'; self.rd = set(); self.wr = set(); self.passes = 0
        self.srcc = set(); self.srcab = set(); self.data = set()
        self.states = 1
        if op == 's_nop':
            self.kind = 'nop'; self.states = int(ops[0], 0) + 1
        elif op.startswith('v_mfma'):
            self.kind = 'mfma'; self.passes = 8 if '32x32x16' in op else 4
            assert '32x32x16' in op or '16x16x32' in op, op
            self.wr = R(0); self.srcab = R(1) | R(2); self.srcc = R(3); self.rd = self.srcab | self.srcc
        elif op.startswith('buffer_load') or op.startswith('global_load'):
            lds = ' lds' in (' ' + self.mods) or '_lds_' in op
            self.kind = 'vload'
            if lds:
                self.rd = allr(0) | {'m0'}; self.lds = True
            else:
                self.wr = R(0); self.rd = allr(1)
        elif op.startswith('buffer_store'):
            self.kind = 'vstore'; self.rd = allr(0); self.data = R(0)
        elif op.startswith('global_store'):
            self.kind = 'vstore'; self.rd = allr(0); self.data = R(1)
        elif op.startswith('buffer_atomic') or op.startswith('global_atomic'):
            self.kind = 'vstore'; self.rd = allr(0)
        elif op.startswith('ds_read'):
            self.kind = 'ds'; self.wr = R(0); self.rd = allr(1)
            if 'd16' in op: self.rd |= R(0)
        elif op.startswith('ds_write') or op.startswith('ds_add'):
            self.kind = 'ds'; self.rd = allr(0)
        elif op.startswith('ds_'):
            self.kind = 'ds'; self.wr = R(0); self.rd = allr(1)
        elif op.startswith('v_'):
            self.kind = 'valu'
            base = op.replace('_e32', '').replace('_e64', '')
            self.trans = base in TRANS
            self.dot = base.startswith('v_dot')
            self.dpp = '_dpp' in op
            self.perml = base.startswith('v_permlane')
            self.rdlane = base in ('v_readfirstlane_b32', 'v_readlane_b32')
            if self.perml or base == 'v_swap_b32':
                self.wr = R(0) | R(1); self.rd = R(0) | R(1)
            elif base.startswith('v_add_co') or base.startswith('v_sub_co') or base.startswith('v_addc_co'):
                self.wr = R(0) | R(1); self.rd = allr(2)
            else:
                self.wr = R(0); self.rd = allr(1)
                if base.startswith('v_fmac') or base.startswith('v_dot2c') or base.startswith('v_writelane') or self.dpp:
                    self.rd |= R(0)
                if base.startswith('v_cmpx'): self.wr |= {'exec'}
        elif op.startswith('s_load') or op.startswith('s_memrealtime') or op.startswith('s_memtime'):
            self.kind = 'smem'; self.wr = R(0); self.rd = allr(1)
        elif op.startswith('s_'):
            self.kind = 'salu'
            if op.startswith('s_cmp') or op.startswith('s_cbranch') or op in ('s_branch', 's_barrier', 's_waitcnt', 's_endpgm', 's_sleep', 's_setprio'):
                self.rd = allr(0)
            else:
                self.wr = R(0); self.rd = allr(1)
                if 'saveexec' in op: self.wr |= {'exec'}
        else:
            raise ValueError('unknown op ' + text)

def isv(r): return r[0] in 'va' and r != 'vcc'
def iss(r): return (r[0] == 's' and r != 'scc') or r == 'vcc'

def need(p, c):
    n = 0
    if p.kind == 'valu':
        wv = {r for r in p.wr if isv(r)}; ws = {r for r in p.wr if iss(r)}
        if c.kind == 'mfma' and wv & c.rd: n = max(n, 3 if p.dot else 2)
        if c.kind == 'valu':
            if p.trans and not c.trans and wv & c.rd: n = max(n, 1)
            if p.trans and c.trans and wv & c.rd: n = max(n, 1)
            if c.perml and wv & c.rd: n = max(n, 2)
            if c.dpp and wv & c.rd: n = max(n, 2)
            if c.rdlane and wv & c.rd: n = max(n, 1)
            if ws & c.rd: n = max(n, 4 if c.rdlane else 2)
            if p.dot:
                same = p.op == c.op
                if same:
                    ab = regs_of(c.ops[1]) | regs_of(c.ops[2])
                    if wv & ab: n = max(n, 3)
                elif wv & (c.rd | c.wr): n = max(n, 3)
            if 'exec' in p.wr and (c.dpp or c.perml or c.rdlane): n = max(n, 5)
        if p.dot and c.kind in ('vload', 'vstore', 'ds') and wv & c.rd: n = max(n, 3)
        if c.kind in ('vload', 'vstore') and ws & c.rd: n = max(n, 5)
        if c.kind == 'salu' and ws & c.rd: n = max(n, 2)
        if 'exec' in p.wr and c.kind == 'mfma': n = max(n, 4)
    if p.kind == 'salu' and 'm0' in p.wr and c.kind == 'vload' and 'm0' in c.rd: n = max(n, 1)
    if p.kind == 'mfma':
        big = p.passes == 8
        if c.kind == 'mfma':
            if p.wr & c.srcab: n = max(n, 12 if big else 8)
            if p.wr & c.srcc:
                if not (p.wr == c.srcc and p.passes == c.passes): n = max(n, 10 if big else 6)
            elif p.wr & c.wr:
                n = max(n, 10 if big else 6)
        elif c.kind in ('valu', 'vload', 'vstore', 'ds'):
            if p.wr & (c.rd | c.wr): n = max(n, 12 if big else 8)
            if c.kind == 'valu' and p.srcc & c.wr: n = max(n, 7 if big else 3)
    if p.kind == 'vstore' and len(p.data) >= 3 and p.data & c.wr:
        n = max(n, 2)
    if p.kind == 'ds' and p.op in ('ds_write_b128', 'ds_write_b96') and c.kind == 'valu' and (p.rd & c.wr):
        n = max(n, 1)
    return n

class Asm:
    def __init__(self):
        self.lines = []
        self.hist = []
        self.vm = []
        self.lg = []
        self.smem = False
        self.nins = 0
    def raw(self, s):
        self.lines.append(s)
    def comment(self, s):
        self.lines.append('    ; ' + s)
    def label(self, name, reset=True):
        self.lines.append(name + ':')
    def newpath(self):
        self.hist = []; self.vm = []; self.lg = []; self.smem = False
    def __call__(self, text, tag=None):
        for t in text.split('\n'):
            t = t.strip()
            if not t or t.startswith(';'): continue
            self._emit(t, tag)
    def _emit(self, t, tag):
        ins = Ins(t)
        dist = 0; req = 0
        for p in reversed(self.hist):
            n = need(p, ins)
            if n - dist > req: req = n - dist
            dist += p.states
            if dist > 24: break
        while req > 0:
            k = min(req, 16)
            nop = Ins(f's_nop {k-1}')
            self.lines.append(f'    s_nop {k-1}')
            self.hist.append(nop); req -= k
        self.lines.append('    ' + t)
        self.hist.append(ins); self.nins += 1
        if len(self.hist) > 64: self.hist = self.hist[-48:]
        if ins.kind in ('vload', 'vstore'):
            self.vm.append(tag)
        elif ins.kind == 'ds':
            self.lg.append(tag)
        elif ins.kind == 'smem':
            self.smem = True
    def _cnt(self, q, tags):
        last = -1
        for i, x in enumerate(q):
            if x in tags: last = i
        return last
    def wait(self, vm=None, lg=None):
        parts = []
        if vm is not None:
            if vm == 'all': n = 0; self.vm = []
            else:
                tags = vm if isinstance(vm, (list, tuple, set)) else [vm]
                last = self._cnt(self.vm, tags)
                if last >= 0:
                    n = len(self.vm) - 1 - last; self.vm = self.vm[last + 1:]
                    n = min(n, 63)
                else: n = None
            if n is not None: parts.append(f'vmcnt({n})')
        if lg is not None:
            if lg == 'all' or self.smem: n = 0; self.lg = []; self.smem = False
            else:
                tags = lg if isinstance(lg, (list, tuple, set)) else [lg]
                last = self._cnt(self.lg, tags)
                if last >= 0:
                    n = len(self.lg) - 1 - last; self.lg = self.lg[last + 1:]
                    n = min(n, 15)
                else: n = None
            if n is not None: parts.append(f'lgkmcnt({n})')
        if parts:
            self('s_waitcnt ' + ' '.join(parts))
    def text(self):
        return '\n'.join(self.lines) + '\n'

def vr(a, n=1, f='v'):
    return f'{f}{a}' if n == 1 else f'{f}[{a}:{a+n-1}]'

class Reg:
    def __init__(self, idx): self.idx = idx
    def r(self, off=0, n=1):
        i = self.idx + off
        if i < 256:
            assert i + n <= 256
            return vr(i, n, 'v')
        return vr(i - 256, n, 'a')

def ur(i, n=1):
    if i < 256:
        assert i + n <= 256, (i, n)
        return vr(i, n, 'v')
    return vr(i - 256, n, 'a')
```

```python
from asmlib import *
from gen import *
import gen

L_XU = 81920
L_RED = 81920
L_ST = 143360
L_VEC = 147456
L_TR = 150528
K2_LDS = L_TR + 4 * 2816

def k2(a):
    opt = gen.opt
    ZR = 32; U1V = 112; HB = 160; ACC1 = 192
    W2C = ACC1; DD = [ACC1 + 16, ACC1 + 32]; TD = ACC1 + 48
    XB = [U1V, U1V + 20]
    CSV = 80; B1V = 96
    A0 = 256
    def w1reg(u, ks):
        if u == 0: return A0 + 4 * ks
        if ks < 24: return A0 + 160 + 4 * ks
        if ks < 36: return U1V + 4 * (ks - 24)
        return A0 + 4 * (ks - 36)
    def w2reg(fr):
        if fr < 12: return ZR + 4 * fr
        if fr < 48: return A0 + 16 + 4 * (fr - 12)
        if fr < 52: return A0 + 4 * (fr - 48)
        return A0 + 160 + 4 * (fr - 52)
    V_G = 1; V_N = 2
    V_XOFF = 3; V_ZOFF = 4; V_L16 = 5; V_L16B = 6; V_U1 = 7
    V_DA = 8; V_DB = 9
    V_MA = 10; V_MB = 11
    V_EX = 12; V_EX0 = 13
    V_MASK = 14
    V_S0 = 15; V_S1 = 16
    V_ONE = 17
    V_SD = 18; V_QD = 19; V_SM = 20; V_QM = 21
    V_STD = 22; V_STM = 23
    V_HB = 24
    V_RS = 28; V_NM = 30
    T0 = HB

    a.label('k2_kernel')
    stamp(a, 0, 1)
    a('s_cmp_ge_u32 s2, 256')
    a('s_cbranch_scc1 L2_end')
    a('s_load_dwordx2 s[4:5], s[0:1], 0')
    a('s_load_dwordx2 s[6:7], s[0:1], 96')
    a('s_load_dwordx2 s[8:9], s[0:1], 56')
    a('s_load_dwordx4 s[12:15], s[0:1], 72')
    a('v_lshrrev_b32 v1, 6, v0')
    a('v_and_b32 v0, 63, v0')
    a('v_readfirstlane_b32 s3, v1')
    a('s_and_b32 s16, s2, 7')
    a('s_lshr_b32 s17, s2, 3')
    a('s_lshl_b32 s16, s16, 2')
    a('s_lshr_b32 s18, s17, 3')
    a('s_add_u32 s16, s16, s18')
    a('s_and_b32 s17, s17, 7')
    a('s_sub_u32 s18, 64, s16')
    a('s_cmp_eq_u32 s16, 0')
    a('s_cselect_b32 s18, 32, s18')
    a('s_cmp_lt_u32 s3, 2')
    a('s_cselect_b32 s19, s16, s18')
    a('s_and_b32 s20, s3, 1')
    a(f'v_lshrrev_b32 v{T0}, 2, v0')
    a(f'v_lshrrev_b32 v{T0+1}, 4, v0')
    a(f'v_xor_b32 v{T0+1}, v{T0+1}, v0')
    a(f'v_and_b32 v{T0+1}, 3, v{T0+1}')
    a(f'v_lshlrev_b32 v{T0+1}, 4, v{T0+1}')
    a('s_mov_b32 s21, 81920')
    a(f'v_mad_u32_u24 v{V_XOFF}, v{T0}, s21, v{T0+1}')
    a('s_lshl_b32 s21, s20, 10')
    a('s_add_u32 s21, s21, s19')
    a('s_mul_i32 s21, s21, 1280')
    a('s_lshl_b32 s22, s3, 10')
    a(f'v_lshrrev_b32 v{V_G}, 5, v0')
    a(f'v_and_b32 v{V_N}, 31, v0')
    a(f'v_and_b32 v{T0}, 3, v0')
    a(f'v_bfe_u32 v{T0+1}, v0, 2, 1')
    a(f'v_lshl_add_u32 v{T0}, v{T0+1}, 4, v{T0}')
    a(f'v_bfe_u32 v{T0+1}, v0, 3, 2')
    a(f'v_lshl_add_u32 v{T0}, v{T0+1}, 2, v{T0}')
    a(f'v_mul_u32_u24 v{V_ZOFF}, 5120, v{V_G}')
    a(f'v_lshl_add_u32 v{V_ZOFF}, v{T0}, 2, v{V_ZOFF}')
    a('s_mul_i32 s23, s19, 40960')
    a('s_mul_i32 s24, s20, 640')
    a('s_add_u32 s23, s23, s24')
    for i in range(8):
        a(f's_add_u32 s{40+i}, s23, {(i>>1)*10240 + (i&1)*2560}')
    a.wait(lg='all')
    srd(a, 28, 4, 0, S * D * 2)
    srd(a, 32, 6, Z_OFF, Z_SZ)
    for Q in range(20):
        base = Q * 4096 + (40960 if Q >= 10 else 0) - 64 * Q
        a(f's_add_u32 m0, s22, {base}')
        a('s_nop 0')
        a(f'buffer_load_dwordx4 v{V_XOFF}, s[28:31], s21 offen offset:{64*Q} lds', tag='x')
    def zload(i):
        for kk in range(4):
            for jj in range(4):
                a(f'buffer_load_dword v{ZR+16*i+4*kk+jj}, v{V_ZOFF}, s[32:35], s{40+2*kk+(jj>>1)} offen offset:{(jj&1)*1280 + i*128}', tag=f'z{i}')
    zload(0); zload(1)
    stamp(a, 1, 1)
    srd(a, 36, 6, W1F_OFF, W1F_SZ)
    srd(a, 48, 6, CS_OFF, CS_SZ)
    srd(a, 52, 8, 0, F * 2)
    srd(a, 56, 12, 0, D * 2)
    srd(a, 60, 6, W2F_OFF, W2F_SZ)
    srd(a, 64, 6, R_OFF, R_SZ)
    srd(a, 68, 6, FLAG_OFF, FLAG_SZ)
    srd(a, 8, 14, 0, S * D * 2)
    a(f'v_cvt_f32_u32 v{T0}, v{V_N}')
    a(f'v_mul_f32 v{T0}, {f32(1/32)}, v{T0}')
    a(f'v_cvt_f32_u32 v{T0+1}, v{V_G}')
    a(f'v_mul_f32 v{T0+1}, 4.0, v{T0+1}')
    for kk in range(4):
        for jj in range(0, 4, 2):
            a(f'v_add_f32 v{T0+2}, {f32(8.0*kk+jj)}, v{T0+1}')
            a(f'v_mul_f32 v{T0+2}, v{T0+2}, v{T0}')
            a(f'v_add_f32 v{T0+3}, v{T0+2}, v{T0}')
            a(f'v_cos_f32 v{T0+4}, v{T0+2}')
            a(f'v_sin_f32 v{T0+5}, v{T0+2}')
            a(f'v_cos_f32 v{T0+6}, v{T0+3}')
            a(f'v_sin_f32 v{T0+7}, v{T0+3}')
            a(f'v_cvt_pk_bf16_f32 v{W2C+4*kk+jj}, v{T0+4}, v{T0+5}')
            a(f'v_cvt_pk_bf16_f32 v{W2C+4*kk+jj+1}, v{T0+6}, v{T0+7}')
    a(f'v_lshlrev_b32 v{V_L16}, 4, v0')
    a(f'v_add_u32 v{V_L16B}, 4096, v{V_L16}')
    a('s_cmp_eq_u32 s3, 3')
    a('s_cselect_b32 s24, 0x40000000, 0')
    a(f'v_add_u32 v{V_U1}, s24, v{V_L16}')
    a('s_lshr_b32 s25, s3, 1')
    a('s_lshl_b32 s25, s25, 5')
    a(f'v_add_u32 v{T0}, s25, v{V_N}')
    a(f'v_lshlrev_b32 v{T0+1}, 6, v{V_N}')
    a(f'v_add_u32 v{T0+1}, s19, v{T0+1}')
    a(f'v_sub_u32 v{T0+1}, 2048, v{T0+1}')
    a(f'v_and_b32 v{T0+2}, 63, v{T0+1}')
    a(f'v_bfe_u32 v{T0+1}, v{T0+1}, 6, 5')
    a(f'v_cmp_ne_u32 vcc, s16, v{T0+2}')
    a(f'v_cndmask_b32 v{T0+2}, 0, 32, vcc')
    a(f'v_add_u32 v{T0+1}, v{T0+1}, v{T0+2}')
    a(f'v_bfe_u32 v{T0+2}, v{T0}, 2, 2')
    a(f'v_lshlrev_b32 v{T0+3}, 1, v{V_G}')
    a(f'v_xor_b32 v{T0+2}, v{T0+2}, v{T0+3}')
    a(f'v_lshlrev_b32 v{T0+2}, 4, v{T0+2}')
    a(f'v_lshl_add_u32 v{T0+2}, v{T0}, 6, v{T0+2}')
    a('s_mul_i32 s24, s20, 20480')
    a(f'v_add_u32 v{V_DA}, s24, v{T0+2}')
    a(f'v_xor_b32 v{V_DB}, 16, v{V_DA}')
    a(f'v_bfe_u32 v{T0+2}, v{T0+1}, 2, 2')
    a(f'v_xor_b32 v{T0+4}, v{T0+2}, v{T0+3}')
    a(f'v_xor_b32 v{T0+5}, 2, v{T0+4}')
    a(f'v_lshlrev_b32 v{T0+6}, 6, v{T0+1}')
    a(f'v_lshl_add_u32 v{T0+5}, v{T0+5}, 4, v{T0+6}')
    a('s_sub_u32 s24, 61440, s24')
    a(f'v_add_u32 v{V_MA}, s24, v{T0+5}')
    a(f'v_xor_b32 v{V_MB}, 16, v{V_MA}')
    a(f'v_lshl_add_u32 v{T0+4}, v{T0+4}, 4, v{T0+6}')
    a(f'v_xor_b32 v{T0+5}, 1, v{V_G}')
    a(f'v_lshl_add_u32 v{T0+4}, v{T0+5}, 12, v{T0+4}')
    a(f'v_add_u32 v{V_EX}, s24, v{T0+4}')
    a(f'v_or_b32 v{T0+5}, s20, v{V_G}')
    a(f'v_cmp_eq_u32 vcc, 0, v{T0+5}')
    a(f'v_mov_b32 v{T0+5}, 40960')
    a(f'v_cndmask_b32 v{T0+5}, 0, v{T0+5}, vcc')
    a(f'v_sub_u32 v{V_EX0}, v{V_EX}, v{T0+5}')
    a(f'v_cndmask_b32 v{V_MASK}, 1.0, 0, vcc')
    a('s_lshl_b32 s24, s20, 4')
    a(f's_add_u32 s24, s24, {L_ST}')
    a(f'v_lshl_add_u32 v{T0+5}, v{V_G}, 3, s24')
    a(f'v_lshl_add_u32 v{V_STD}, v{T0}, 6, v{T0+5}')
    a(f'v_add_u32 v{V_STM}, v{T0+6}, v{T0+5}')
    a(f'v_bfe_u32 v{T0+2}, v{V_N}, 2, 2')
    a(f'v_xor_b32 v{T0+2}, v{T0+2}, v{V_G}')
    a(f'v_lshlrev_b32 v{T0+2}, 4, v{T0+2}')
    a(f'v_lshl_add_u32 v{V_HB}, v{V_N}, 6, v{T0+2}')
    a(f'v_xor_b32 v{V_HB+1}, 32, v{V_HB}')
    a(f'v_add_u32 v{V_HB+2}, 40960, v{V_HB}')
    a(f'v_add_u32 v{V_HB+3}, 40960, v{V_HB+1}')
    a(f'v_mov_b32 v{V_S0}, 0x3f80')
    a(f'v_mov_b32 v{V_S1}, 1.0')
    a(f'v_mov_b32 v{V_ONE}, 0x3f803f80')
    for r in (V_SD, V_QD, V_SM, V_QM): a(f'v_mov_b32 v{r}, 0')
    zload(2); zload(3); zload(4)
    a('s_mul_i32 s26, s17, 7')
    a('s_add_u32 s26, s26, s3')
    a(f'v_lshl_add_u32 v{T0}, v{V_G}, 7, v{V_N}')
    a('s_lshl_b32 s24, s26, 5')
    a(f'v_add_u32 v{T0}, s24, v{T0}')
    a('s_cmp_eq_u32 s3, 3')
    a('s_cselect_b32 s24, 0x100000, 0')
    a(f'v_mad_u32_u24 v{T0}, v{V_G}, s24, v{T0}')
    a(f'v_lshlrev_b32 v{T0+1}, 3, v{T0}')
    a(f'v_lshlrev_b32 v{T0}, 1, v{T0}')
    a(f'v_lshlrev_b32 v{T0+2}, 2, v0')
    a('s_mul_i32 s27, s17, 160')
    a(f'buffer_load_dwordx2 v[{T0+4}:{T0+5}], v{T0+1}, s[48:51], 0 offen', tag='vec')
    a(f'buffer_load_ushort v{T0+6}, v{T0}, s[52:55], 0 offen', tag='vec')
    a(f'buffer_load_dword v{T0+7}, v{T0+2}, s[56:59], s27 offen', tag='vec')
    a('s_mul_i32 s72, s26, 40960')
    def w1load(u, ks):
        off = ks * 1024 + u * 163840
        if ks % 4 == 0 or w1load.cur != (u, ks // 4):
            a(f's_add_u32 s73, s72, {off - (ks % 4) * 1024}')
            w1load.cur = (u, ks // 4)
        a(f'buffer_load_dwordx4 {ur(w1reg(u, ks), 4)}, v{V_U1 if u else V_L16}, s[36:39], s73 offen offset:{(ks % 4) * 1024}', tag=f'w1_{u}_{ks}')
    w1load.cur = None
    w1q = [(0, ks) for ks in range(40)] + [(1, ks) for ks in range(24)]
    a.wait(vm='x')
    a('s_barrier')
    stamp(a, 2, 1)
    def xreads(i):
        xb = XB[i & 1]
        a(f'ds_read_b128 v[{xb}:{xb+3}], v{V_DA} offset:{i*4096}', tag=f'xd{i}')
        a(f'ds_read_b128 v[{xb+4}:{xb+7}], v{V_DB} offset:{i*4096}', tag=f'xd{i}')
        a(f'ds_read_b128 v[{xb+8}:{xb+11}], v{V_MA} offset:{40960 + (4-i)*4096}', tag=f'xm{i}')
        a(f'ds_read_b128 v[{xb+12}:{xb+15}], v{V_MB} offset:{40960 + (4-i)*4096}', tag=f'xm{i}')
        a(f'ds_read_u16 v{xb+16}, v{V_EX0 if i == 0 else V_EX} offset:{40960 + (4-i)*4096}', tag=f'xm{i}')
    def s2mfma(i):
        a.wait(vm=f'z{i}')
        d = DD[i & 1]
        for kk in range(4):
            cin = '0' if kk == 0 else f'v[{d}:{d+15}]'
            a(f'v_mfma_f32_32x32x16_bf16 v[{d}:{d+15}], v[{ZR+16*i+4*kk}:{ZR+16*i+4*kk+3}], v[{W2C+4*kk}:{W2C+4*kk+3}], {cin}')
    xreads(0)
    s2mfma(0)
    for i in range(5):
        d = DD[i & 1]; xb = XB[i & 1]
        for _ in range(13):
            if w1q: w1load(*w1q.pop(0))
        if i < 4:
            s2mfma(i + 1)
        a.wait(lg=f'xd{i}')
        for r in range(16):
            src = d + r
            if i == 0 and r == 0:
                a(f'v_mul_f32 v{TD}, v{V_MASK}, v{d}'); src = TD
            a(f'v_dot2_f32_bf16 v{TD+r}, v{xb+(r>>1)}, v{V_S1 if r & 1 else V_S0}, v{src}')
        a.wait(lg=f'xm{i}')
        for r in range(16):
            if r == 0: xr, hi = xb + 16, 0
            else:
                el = 16 - r
                xr, hi = xb + 8 + (el >> 1), el & 1
            a(f'v_dot2c_f32_bf16 v{d+r}, v{xr}, v{V_S1 if hi else V_S0}')
        for q in range(8):
            a(f'v_cvt_pk_bf16_f32 v{xb+q}, v{TD+2*q}, v{TD+2*q+1}')
        a(f'ds_write_b128 v{V_DA}, v[{xb}:{xb+3}] offset:{i*4096}', tag='hw')
        a(f'ds_write_b128 v{V_DB}, v[{xb+4}:{xb+7}] offset:{i*4096}', tag='hw')
        for q in range(8):
            a(f'v_cvt_pk_bf16_f32 v{xb+8+q}, v{d+15-2*q}, v{d+14-2*q}')
        a(f'ds_write_b128 v{V_MA}, v[{xb+8}:{xb+11}] offset:{(4-i)*4096}', tag='hw')
        a(f'ds_write_b128 v{V_MB}, v[{xb+12}:{xb+15}] offset:{(4-i)*4096}', tag='hw')
        if i < 4: xreads(i + 1)
        for q in range(8):
            a(f'v_dot2c_f32_bf16 v{V_SD}, v{xb+q}, v{V_ONE}')
            a(f'v_dot2c_f32_bf16 v{V_QD}, v{xb+q}, v{xb+q}')
            a(f'v_dot2c_f32_bf16 v{V_SM}, v{xb+8+q}, v{V_ONE}')
            a(f'v_dot2c_f32_bf16 v{V_QM}, v{xb+8+q}, v{xb+8+q}')
    a(f'ds_write_b64 v{V_STD}, v[{V_SD}:{V_QD}]', tag='hw')
    a(f'ds_write_b64 v{V_STM}, v[{V_SM}:{V_QM}] offset:32', tag='hw')
    a.wait(vm='vec')
    a('s_mul_i32 s24, s3, 768')
    a(f's_add_u32 s24, s24, {L_VEC}')
    a(f'v_add_u32 v{T0+2}, s24, v{T0+2}')
    a(f'v_add_f32 v{T0+4}, v{T0+4}, v{T0+5}')
    a(f'v_lshlrev_b32 v{T0+6}, 16, v{T0+6}')
    a(f'ds_write_b32 v{T0+2}, v{T0+4}', tag='hw')
    a(f'ds_write_b32 v{T0+2}, v{T0+6} offset:256', tag='hw')
    a(f'ds_write_b32 v{T0+2}, v{T0+7} offset:512', tag='hw')
    V_VEC = V_DA
    V_STR = V_DB
    V_ROFF = V_MA
    a(f'v_lshl_add_u32 v{V_VEC}, v{V_G}, 6, s24')
    a(f'v_lshlrev_b32 v{V_STR}, 6, v{V_N}')
    a(f'v_add_u32 v{V_STR}, {L_ST}, v{V_STR}')
    a.wait(lg='all')
    a('s_barrier')
    stamp(a, 3, 1)

    a('s_mul_i32 s74, s3, 14')
    a('s_mul_i32 s74, s74, 40960')
    a('s_mul_i32 s24, s17, 5120')
    a('s_add_u32 s74, s74, s24')
    def w2load(fr):
        i, T = divmod(fr, 5)
        if w2load.cur != i:
            a(f's_add_u32 s75, s74, {i*40960}'); w2load.cur = i
        v, off = (V_L16, T * 1024) if T < 4 else (V_L16B, 0)
        a(f'buffer_load_dwordx4 {ur(w2reg(fr), 4)}, v{v}, s[60:63], s75 offen offset:{off}', tag=f'w2_{i}')
    w2load.cur = None
    def hread(step):
        ks = step % 40
        Q = ks >> 1
        ad = V_HB + (2 if Q >= 10 else 0) + (ks & 1)
        for tt in range(2):
            r = HB + (step & 3) * 8 + tt * 4
            a(f'ds_read_b128 v[{r}:{r+3}], v{ad} offset:{(Q % 10) * 4096 + tt * 2048}', tag=f'h{step}')
    def stats_fill():
        f = []
        tmp = CSV
        for tt in range(2):
            for q in range(4):
                f.append(lambda tt=tt, q=q: a(f'ds_read_b128 v[{tmp+16*tt+4*q}:{tmp+16*tt+4*q+3}], v{V_STR} offset:{tt*2048 + q*16}', tag='str'))
        f.append(lambda: None); f.append(lambda: None); f.append(lambda: None); f.append(lambda: None)
        f.append(lambda: a.wait(lg='str'))
        for tt in range(2):
            b = tmp + 16 * tt
            for st in (8, 4, 2):
                for k in range(st):
                    f.append(lambda b=b, st=st, k=k: a(f'v_add_f32 v{b+k}, v{b+k}, v{b+k+st}'))
            f.append(lambda b=b: a(f'v_mul_f32 v{b}, {f32(1/640)}, v{b}'))
            f.append(lambda b=b: a(f'v_mul_f32 v{b+1}, {f32(1/640)}, v{b+1}'))
            f.append(lambda b=b: a(f'v_fma_f32 v{b+1}, -v{b}, v{b}, v{b+1}'))
            f.append(lambda b=b: a(f'v_max_f32 v{b+1}, 0, v{b+1}'))
            f.append(lambda b=b: a(f'v_add_f32 v{b+1}, {f32(1e-5)}, v{b+1}'))
            f.append(lambda b=b, tt=tt: a(f'v_rsq_f32 v{V_RS+tt}, v{b+1}'))
            f.append(lambda b=b, tt=tt: a(f'v_mul_f32 v{V_NM+tt}, -v{b}, v{V_RS+tt}'))
        f.append(lambda: a(f'v_lshrrev_b32 v{tmp}, 4, v{V_N}'))
        f.append(lambda: a(f'v_lshlrev_b32 v{tmp}, 10, v{tmp}'))
        f.append(lambda: a(f'v_lshl_add_u32 v{tmp}, v{V_G}, 9, v{tmp}'))
        f.append(lambda: a(f'v_and_b32 v{tmp+1}, 15, v0'))
        f.append(lambda: a(f'v_lshl_add_u32 v{V_ROFF}, v{tmp+1}, 4, v{tmp}'))
        f.append(lambda: a(f'v_sub_u32 v{tmp}, v{V_U1}, v{V_L16}'))
        f.append(lambda: a(f'v_add_u32 v{V_ROFF+1}, v{V_ROFF}, v{tmp}'))
        f.append(lambda: a('s_mul_i32 s24, s16, 56\ns_add_u32 s24, s24, s26\ns_lshl_b32 s76, s24, 12\ns_add_u32 s77, s76, 16384'))
        return f
    def vec_fill(u):
        f = []
        for q in range(4):
            f.append(lambda q=q: a(f'ds_read_b128 v[{CSV+4*q}:{CSV+4*q+3}], v{V_VEC} offset:{u*128 + q*16}', tag=f'vec{u}'))
            f.append(lambda q=q: a(f'ds_read_b128 v[{B1V+4*q}:{B1V+4*q+3}], v{V_VEC} offset:{256 + u*128 + q*16}', tag=f'vec{u}'))
        return f
    def epi_fill(u):
        f = [lambda: a.wait(lg=f'vec{u}')]
        E = V_SD
        for tt in range(2):
            ac = ACC1 + u * 32 + tt * 16
            for r0 in range(0, 16, 4):
                for r in range(r0, r0 + 4):
                    f.append(lambda r=r, tt=tt: a(f'v_fma_f32 v{E+(r&3)}, v{V_NM+tt}, v{CSV+r}, v{B1V+r}'))
                for r in range(r0, r0 + 4):
                    f.append(lambda r=r, tt=tt, ac=ac: a(f'v_fma_f32 v{ac+r}, v{V_RS+tt}, v{ac+r}, v{E+(r&3)}'))
                for r in range(r0, r0 + 4):
                    f.append(lambda r=r, ac=ac: a(f'v_max_f32 v{ac+r}, 0, v{ac+r}'))
                for r in range(r0, r0 + 4):
                    f.append(lambda r=r, ac=ac: a(f'v_mul_f32 v{ac+r}, v{ac+r}, v{ac+r}'))
                for q in (r0 // 2, r0 // 2 + 1):
                    f.append(lambda q=q, ac=ac: a(f'v_cvt_pk_bf16_f32 v{ac+q}, v{ac+2*q}, v{ac+2*q+1}'))
                if r0 in (4, 12):
                    ab = r0 // 8
                    f.append(lambda ab=ab, ac=ac, tt=tt: a(f'buffer_store_dwordx4 v[{ac+4*ab}:{ac+4*ab+3}], v{V_ROFF+u}, s[64:67], s{76+u} offen offset:{tt*2048 + ab*256} sc1', tag='rst'))
        return f
    for st in range(3): hread(st)
    loads0 = [lambda ks=ks: w1load(1, ks) for ks in range(24, 36)] + [lambda fr=fr: w2load(fr) for fr in range(12)]
    fill = stats_fill() + vec_fill(0)
    for step in range(80):
        u, ks = divmod(step, 40)
        if step == 40:
            stamp(a, 4, 1)
            assert not fill and not loads0
            fill = [lambda: None] * 6 + epi_fill(0) + vec_fill(1)
            loads0 = [lambda fr=fr: w2load(fr) for fr in range(12, 48)]
        if step + 3 < 80: hread(step + 3)
        a.wait(vm=f'w1_{u}_{ks}', lg=f'h{step}')
        for tt in range(2):
            ac = ACC1 + u * 32 + tt * 16
            cin = '0' if ks == 0 else f'v[{ac}:{ac+15}]'
            hb = HB + (step & 3) * 8 + tt * 4
            a(f'v_mfma_f32_32x32x16_bf16 v[{ac}:{ac+15}], {ur(w1reg(u, ks), 4)}, v[{hb}:{hb+3}], {cin}')
            for _ in range(3 if u else 2):
                if fill: fill.pop(0)()
            if tt == 1:
                if u == 0 and 4 <= ks < 8: w1load(1, 32 + ks)
                elif loads0: loads0.pop(0)()
    assert not fill and not loads0, (len(fill), len(loads0))
    stamp(a, 5, 1)
    for f in epi_fill(1): f()
    a.wait(vm='all')
    a('s_barrier')
    stamp(a, 6, 1)
    a('s_lshl_b32 s24, s16, 3')
    a('s_add_u32 s25, s24, s17')
    a('s_lshl_b32 s25, s25, 7')
    a('s_cmp_lg_u32 s3, 0')
    a('s_cbranch_scc1 L2_noflag')
    a('v_mov_b32 v18, 1')
    a('v_mov_b32 v19, 0')
    a('s_mov_b64 exec, 1')
    a('buffer_store_dword v18, v19, s[68:71], s25 offen sc1')
    a('s_mov_b64 exec, -1')
    a.label('L2_noflag')
    a.vm = []
    for fr in range(48, 70): w2load(fr)
    ACC2 = ACC1
    def acc2(sig, T):
        if sig == 3: return ACC1 + 4 * T
        k = sig * 5 + T
        return ACC1 + 20 + 4 * k if k < 11 else A0 + 232 + 4 * (k - 11)
    RING = 80
    V_G4 = 1; V_T = 2; V_R = 8
    V_POLL = 12; V_RED = 13
    V_RRD = 16; V_TW = 17; V_TR = 18; V_OO = 21
    X = RING
    a(f'v_lshrrev_b32 v{V_G4}, 4, v0')
    a(f'v_and_b32 v{V_T}, 15, v0')
    a(f'v_and_b32 v{X}, 1, v0')
    a('s_lshl_b32 s25, s3, 1')
    a('s_add_u32 s24, s24, s25')
    a(f'v_add_u32 v{X}, s24, v{X}')
    a(f'v_lshlrev_b32 v{V_POLL}, 7, v{X}')
    for sig in range(4):
        a(f's_add_u32 s24, s3, {1+sig}')
        a('s_and_b32 s24, s24, 3')
        a('s_lshl_b32 s25, s24, 10')
        a(f'v_add_u32 v{V_R+sig}, s25, v{V_L16}')
        if sig < 3:
            a('s_mul_i32 s25, s24, 15360')
            a(f's_add_u32 s25, s25, {L_RED + sig*5120}')
            a(f'v_add_u32 v{V_RED+sig}, s25, v{V_L16}')
    a('s_mul_i32 s25, s3, 15360')
    a(f's_add_u32 s25, s25, {L_RED}')
    a(f'v_add_u32 v{V_RRD}, s25, v{V_L16}')
    a('s_lshl_b32 s24, s3, 4')
    a(f'v_add_u32 v{X}, s24, v{V_T}')
    a(f'v_bfe_u32 v{X+1}, v{X}, 2, 2')
    a(f'v_lshlrev_b32 v{X}, 6, v{X}')
    a('s_mul_i32 s24, s17, 80')
    a(f'v_lshl_add_u32 v{X+2}, v{V_G4}, 2, s24')
    a('s_mul_i32 s25, s3, 768')
    a(f's_add_u32 s25, s25, {L_VEC + 512}')
    a(f'v_lshl_add_u32 v{X+3}, v{V_G4}, 3, s25')
    a('s_cmp_ge_u32 s17, 4')
    a('s_cselect_b64 s[24:25], -1, 0')
    a(f'v_mov_b32 v{X+4}, 639')
    def haddr(dst, kap):
        a(f'v_bfe_u32 v{X+5}, v{kap}, 3, 2')
        a(f'v_xor_b32 v{X+5}, v{X+5}, v{X+1}')
        a(f'v_lshl_add_u32 v{X+5}, v{X+5}, 4, v{X}')
        a(f'v_lshrrev_b32 v{X+6}, 5, v{kap}')
        a(f'v_lshl_add_u32 v{X+5}, v{X+6}, 12, v{X+5}')
        a(f'v_and_b32 v{X+6}, 7, v{kap}')
        a(f'v_lshl_add_u32 v{dst}, v{X+6}, 1, v{X+5}')
    for T in range(5):
        Y = X + 10 + 8 * T
        a(f'v_add_u32 v{X+7}, {16*T}, v{X+2}')
        haddr(Y, X + 7)
        a(f'ds_read_b64 v[{Y+2}:{Y+3}], v{Y}', tag='ini')
        a(f'v_cmp_eq_u32 vcc, 320, v{X+7}')
        a(f'v_max_u32 v{X+7}, 1, v{X+7}')
        a(f'v_subrev_u32 v{X+7}, 1, v{X+7}')
        a(f'v_cndmask_b32 v{X+7}, v{X+7}, v{X+4}, vcc')
        haddr(Y + 1, X + 7)
        a(f'ds_read_u16 v{Y+6}, v{Y+1}', tag='ini')
        a(f'ds_read_b64 v[{Y+4}:{Y+5}], v{X+3} offset:{T*32}', tag='ini')
    a('s_mul_i32 s27, s3, 2816')
    a(f's_add_u32 s27, s27, {L_TR}')
    a(f'v_mul_u32_u24 v{V_TW}, 176, v{V_T}')
    a(f'v_lshl_add_u32 v{V_TW}, v{V_G4}, 3, v{V_TW}')
    a(f'v_add_u32 v{V_TW}, s27, v{V_TW}')
    a('s_mul_i32 s78, s17, 160')
    a('s_add_u32 s78, s78, s21')
    a('s_mov_b32 s26, 81920')
    for k in range(3):
        a(f'v_add_u32 v{X+5}, {64*k}, v0')
        a(f'v_mul_u32_u24 v{X+6}, 6554, v{X+5}')
        a(f'v_lshrrev_b32 v{X+6}, 16, v{X+6}')
        a(f'v_mul_u32_u24 v{X+7}, 10, v{X+6}')
        a(f'v_sub_u32 v{X+5}, v{X+5}, v{X+7}')
        a(f'v_lshlrev_b32 v{X+5}, 4, v{X+5}')
        a(f'v_mad_u32_u24 v{V_OO+k}, v{X+6}, s26, v{X+5}')
        if k == 2:
            a(f'v_cmp_lt_u32 vcc, 15, v{X+6}')
            a(f'v_mov_b32 v{X+7}, 0x40000000')
            a(f'v_cndmask_b32 v{V_OO+k}, v{V_OO+k}, v{X+7}, vcc')
            a(f'v_min_u32 v{X+6}, 15, v{X+6}')
        a(f'v_mul_u32_u24 v{X+6}, 176, v{X+6}')
        a(f'v_add3_u32 v{V_TR+k}, v{X+6}, v{X+5}, s27')
    a.wait(lg='ini')
    for T in range(5):
        Y = X + 10 + 8 * T
        ac = acc2(3, T)
        a(f'v_lshl_or_b32 v{Y+6}, v{Y+2}, 16, v{Y+6}')
        a(f'v_alignbit_b32 v{Y+7}, v{Y+3}, v{Y+2}, 16')
        a(f'v_cndmask_b32 v{Y+2}, v{Y+2}, v{Y+6}, s[24:25]')
        a(f'v_cndmask_b32 v{Y+3}, v{Y+3}, v{Y+7}, s[24:25]')
        for i in range(4):
            if i & 1:
                a(f'v_and_b32 v{ac+i}, 0xffff0000, v{Y+2+(i>>1)}')
                a(f'v_and_b32 v{Y}, 0xffff0000, v{Y+4+(i>>1)}')
            else:
                a(f'v_lshlrev_b32 v{ac+i}, 16, v{Y+2+(i>>1)}')
                a(f'v_lshlrev_b32 v{Y}, 16, v{Y+4+(i>>1)}')
            a(f'v_add_f32 v{ac+i}, v{ac+i}, v{Y}')
    a('s_mul_i32 s24, s16, 56')
    a('s_mul_i32 s25, s3, 14')
    a('s_add_u32 s24, s24, s25')
    a('s_lshl_b32 s76, s24, 12')
    a('s_mov_b32 s25, 0')
    stamp(a, 7, 1)
    a.label('L2_poll')
    a(f'buffer_load_dword v{X}, v{V_POLL}, s[68:71], 0 offen sc1')
    a.wait(vm='all')
    a(f'v_cmp_ne_u32 vcc, 1, v{X}')
    a('s_add_u32 s25, s25, 1')
    a('s_cmp_ge_u32 s25, 0x40000')
    a('s_nop 2')
    a('s_cbranch_vccz L2_go')
    a('s_cbranch_scc1 L2_go')
    a('s_sleep 1')
    a('s_branch L2_poll')
    a.label('L2_go')
    stamp(a, 8, 1)
    def rload(i):
        a(f's_add_u32 s77, s76, {i*4096}')
        for sig in range(4):
            r = RING + (i % 7) * 16 + sig * 4
            a(f'buffer_load_dwordx4 v[{r}:{r+3}], v{V_R+sig}, s[64:67], s77 offen sc1', tag=f'r{i}_{sig}')
    for i in range(7): rload(i)
    for i in range(14):
        for sig in range(4):
            a.wait(vm=f'r{i}_{sig}')
            r = RING + (i % 7) * 16 + sig * 4
            for T in range(5):
                ac = acc2(sig, T)
                cin = '0' if (i == 0 and sig < 3) else ur(ac, 4)
                a(f'v_mfma_f32_16x16x32_bf16 {ur(ac, 4)}, {ur(w2reg(i*5+T), 4)}, v[{r}:{r+3}], {cin}')
        if i + 7 < 14: rload(i + 7)
    stamp(a, 9, 1)
    for sig in range(3):
        for T in range(5):
            a(f'ds_write_b128 v{V_RED+sig}, {ur(acc2(sig, T), 4)} offset:{T*1024}')
    a.wait(lg='all')
    a('s_barrier')
    for T in range(5):
        for s in range(3):
            r = RING + T * 12 + s * 4
            a(f'ds_read_b128 v[{r}:{r+3}], v{V_RRD} offset:{s*5120 + T*1024}', tag=f'rd{T}')
    for T in range(5):
        a.wait(lg=f'rd{T}')
        ac = acc2(3, T); r = RING + T * 12
        for i in range(4): a(f'v_add_f32 v{r+i}, v{r+i}, v{r+4+i}')
        for i in range(4): a(f'v_add_f32 v{ac+i}, v{ac+i}, v{r+8+i}')
        for i in range(4): a(f'v_add_f32 v{ac+i}, v{ac+i}, v{r+i}')
        a(f'v_cvt_pk_bf16_f32 v{ac}, v{ac}, v{ac+1}')
        a(f'v_cvt_pk_bf16_f32 v{ac+1}, v{ac+2}, v{ac+3}')
        a(f'ds_write_b64 v{V_TW}, v[{ac}:{ac+1}] offset:{T*32}', tag='tw')
    a.wait(lg='all')
    for k in range(3):
        a(f'ds_read_b128 v[{RING+4*k}:{RING+4*k+3}], v{V_TR+k}', tag=f'tr{k}')
    for k in range(3):
        a.wait(lg=f'tr{k}')
        a(f'buffer_store_dwordx4 v[{RING+4*k}:{RING+4*k+3}], v{V_OO+k}, s[8:11], s78 offen')
    if opt.stamps:
        a.wait(vm='all'); stamp(a, 10, 1); stamp_flush(a, 11, 1, 6, 3)
    a.label('L2_end')
    a('s_endpgm')
```

```python
import sys, struct
from asmlib import *

NAME = 'sequential_preLN__spectral_fnet__dense_activation_squared_relu__prompt'
S, D, F = 2048, 640, 1728
Z_OFF, Z_SZ = 0x0, 64 * 32 * 1280
W1F_OFF, W1F_SZ = 0x280000, 54 * 40 * 1024
W2F_OFF, W2F_SZ = 0x4A0000, 54 * 40 * 1024
CS_OFF, CS_SZ = 0x6C0000, 1728 * 8
R_OFF, R_SZ = 0x700000, 32 * 56 * 4096
FLAG_OFF, FLAG_SZ = 0xE00000, 256 * 128
TS_OFF = 0x1000000

def f32(x): return '0x%08x' % struct.unpack('<I', struct.pack('<f', x))[0]

class Opt:
    stamps = False
    dbgstamps = 0
    mimic1 = True
    x_nt = False
    w_nt = True
    wf_store = 'sc1'
    z_store = ''
opt = Opt()

def srd(a, d, base, off, size):
    if off:
        a(f's_add_u32 s{d}, s{base}, {hex(off)}')
        a(f's_addc_u32 s{d+1}, s{base+1}, 0')
    else:
        a(f's_mov_b32 s{d}, s{base}')
        a(f's_mov_b32 s{d+1}, s{base+1}')
    a(f's_mov_b32 s{d+2}, {hex(size)}')
    a(f's_mov_b32 s{d+3}, 0x20000')

def stamp(a, idx, kern):
    if opt.stamps:
        a(f's_memrealtime s[{80+2*idx}:{81+2*idx}]')

def stamp_flush(a, n, kern, wsreg, wave_s):
    if not opt.stamps: return
    a.wait(lg='all')
    if opt.dbgstamps and n > 2:
        lab = f'L_dbg{kern}'
        a(f's_cmp_lg_u32 s2, {opt.dbgstamps}')
        a(f's_cbranch_scc1 {lab}')
        a(f's_cmp_lg_u32 s{wave_s}, 0')
        a(f's_cbranch_scc1 {lab}')
        a('s_load_dwordx2 s[74:75], s[0:1], 88')
        a.wait(lg='all')
        a(f's_add_u32 s76, s74, {512*(1-kern)}')
        a('s_addc_u32 s77, s75, 0')
        a('s_mov_b32 s78, 64')
        a('s_mov_b32 s79, 0x20000')
        a('v_mov_b32 v0, 0')
        sel = list(range(6)) if kern == 0 else [0, 1, 2, 3, 4, 5, 6, 8, 9, 10]
        for j, i in enumerate(sel):
            a(f'v_mov_b32 v1, s{80+2*i}')
            a(f'buffer_store_dword v1, v0, s[76:79], 0 offen offset:{4*(j + 6*kern)}')
            a('s_nop 1')
        a.label(lab)
    srd(a, 76, wsreg, TS_OFF + kern * 0x10000, 0x10000)
    a('s_lshl_b32 s75, s2, 8')
    a(f's_lshl_b32 s74, s{wave_s}, 6')
    a('s_add_u32 s75, s75, s74')
    a('v_mov_b32 v0, 0')
    for i in range(n):
        a(f'v_mov_b32 v1, s{80+2*i}')
        a(f'buffer_store_dword v1, v0, s[76:79], s75 offen offset:{4*i}')
        a('s_nop 1')

K1_LDS = 81920 + 1024

def k1(a):
    a.label('k1_kernel')
    stamp(a, 0, 0)
    a('s_cmp_ge_u32 s2, 256')
    a('s_cbranch_scc1 L1_end')
    a('s_load_dwordx2 s[4:5], s[0:1], 0')
    a('s_load_dwordx2 s[6:7], s[0:1], 96')
    a('s_load_dwordx2 s[8:9], s[0:1], 48')
    a('s_load_dwordx2 s[10:11], s[0:1], 64')
    a('v_lshrrev_b32 v1, 6, v0')
    a('v_and_b32 v0, 63, v0')
    a('v_readfirstlane_b32 s3, v1')
    a('s_and_b32 s12, s2, 7')
    a('s_lshr_b32 s13, s2, 3')
    a('s_cmp_eq_u32 s13, 0')
    a('s_cbranch_scc1 L1_misc')
    a('s_cmp_ge_u32 s13, 21')
    a('s_cbranch_scc1 L1_relayout')
    k1_fft(a)
    a.label('L1_end')
    a('s_endpgm')
    a.newpath(); a.smem = True
    a.label('L1_misc')
    k1_misc(a)
    a('s_endpgm')
    a.newpath(); a.smem = True
    a.label('L1_relayout')
    a('s_sub_u32 s13, s13, 21')
    a('s_lshl_b32 s13, s13, 3')
    a('s_add_u32 s13, s13, s12')
    a('s_cmp_ge_u32 s13, 54')
    a('s_cbranch_scc1 L1_w2')
    k1_w1(a)
    a('s_endpgm')
    a.newpath(); a.smem = True
    a.label('L1_w2')
    k1_w2(a)
    a('s_endpgm')

def k1_misc(a):
    a('s_getpc_b64 s[14:15]')
    a.label('L1_pc')
    a('s_sub_u32 s14, s14, L1_pc-k1_kernel')
    a('s_subb_u32 s15, s15, 0')
    a('s_mov_b32 s16, s14')
    a('s_mov_b32 s17, s15')
    a('s_mov_b32 s18, L_code_end-k1_kernel')
    a('s_mov_b32 s19, 0x20000')
    a('s_lshl_b32 s20, s3, 10')
    a('v_lshlrev_b32 v1, 4, v0')
    a('v_add_u32 v1, s20, v1')
    for i in range(8):
        a(f's_mov_b32 s21, {i*4096}')
        a(f'buffer_load_dwordx4 v[{4+4*i}:{7+4*i}], v1, s[16:19], s21 offen')
    a.wait(lg='all')
    srd(a, 24, 6, FLAG_OFF, FLAG_SZ)
    a('s_lshl_b32 s21, s12, 12')
    for i in range(4): a(f'v_mov_b32 v{40+i}, 0')
    a('buffer_store_dwordx4 v[40:43], v1, s[24:27], s21 offen')
    a.wait(vm='all')
    stamp(a, 1, 0)
    stamp_flush(a, 2, 0, 6, 3)

def k1_w1(a):
    nt = ' nt' if opt.w_nt else ''
    a('s_lshr_b32 s14, s13, 1')
    a('s_and_b32 s15, s13, 1')
    a('s_mul_i32 s16, s15, 320')
    a('s_mul_i32 s17, s3, 80')
    a('s_add_u32 s16, s16, s17')
    a('s_add_u32 s17, s16, s15')
    a('v_lshrrev_b32 v1, 3, v0')
    a('v_add_u32 v2, s17, v1')
    a('v_add_u32 v3, 72, v2')
    a('v_mov_b32 v4, 320')
    a('v_cmp_eq_u32 vcc, 640, v3')
    a('v_cndmask_b32 v3, v3, v4, vcc')
    a('v_and_b32 v4, 7, v0')
    a('v_lshlrev_b32 v4, 4, v4')
    a('s_lshl_b32 s18, s14, 7')
    a('v_add_u32 v4, s18, v4')
    a('s_movk_i32 s19, 3456')
    a('v_mad_u32_u24 v2, v2, s19, v4')
    a('v_mad_u32_u24 v3, v3, s19, v4')
    a('s_mul_i32 s24, s3, 10240')
    a.wait(lg='all')
    srd(a, 20, 8, 0, D * F * 2)
    for i in range(10):
        a(f's_add_u32 m0, s24, {i*1024}')
        if i < 9:
            a(f's_mov_b32 s25, {i*8*3456}')
            a(f'buffer_load_dwordx4 v2, s[20:23], s25 offen{nt} lds', tag=f'd{i}')
        else:
            a(f'buffer_load_dwordx4 v3, s[20:23], 0 offen{nt} lds', tag=f'd{i}')
    srd(a, 28, 6, W1F_OFF, W1F_SZ)
    srd(a, 32, 6, CS_OFF, CS_SZ)
    a('v_bfe_u32 v1, v0, 2, 2')
    a('v_lshrrev_b32 v4, 5, v0')
    a('v_lshl_add_u32 v1, v4, 3, v1')
    a('v_lshlrev_b32 v1, 7, v1')
    a('v_and_b32 v4, 1, v0')
    a('v_lshl_add_u32 v1, v4, 5, v1')
    a('v_bfe_u32 v4, v0, 4, 1')
    a('v_lshl_add_u32 v1, v4, 4, v1')
    a('v_bfe_u32 v4, v0, 1, 1')
    a('v_lshl_add_u32 v1, v4, 3, v1')
    a('v_add_u32 v1, s24, v1')
    a('v_lshlrev_b32 v5, 4, v0')
    a('v_mov_b32 v6, 0x3f803f80')
    a('v_mov_b32 v8, 0')
    a('v_mov_b32 v9, 0')
    a('s_mul_i32 s26, s14, 81920')
    a('s_lshl_b32 s27, s16, 6')
    a('s_add_u32 s26, s26, s27')
    st = (' ' + opt.wf_store) if opt.wf_store else ''
    for k in range(5):
        a.wait(vm=f'd{2*k+1}')
        for h in range(2):
            r = 12 + 8 * k + 4 * h
            a(f'ds_read_b64_tr_b16 v[{r}:{r+1}], v1 offset:{k*2048 + h*64}', tag=f't{k}{h}')
            a(f'ds_read_b64_tr_b16 v[{r+2}:{r+3}], v1 offset:{k*2048 + h*64 + 512}', tag=f't{k}{h}')
        for h in range(2):
            r = 12 + 8 * k + 4 * h
            a.wait(lg=f't{k}{h}')
            a(f's_add_u32 s27, s26, {h*40960 + k*1024}')
            a(f'buffer_store_dwordx4 v[{r}:{r+3}], v5, s[28:31], s27 offen{st}', tag='st')
            for q in range(4):
                a(f'v_dot2c_f32_bf16 v{8+h}, v{r+q}, v6')
    a('v_permlane32_swap_b32 v8, v9')
    a('v_add_f32 v8, v8, v9')
    a('s_lshl_b32 s27, s3, 8')
    a('v_lshlrev_b32 v4, 2, v0')
    a('v_add_u32 v7, s27, v4')
    a('ds_write_b32 v7, v8 offset:40960')
    a.wait(lg='all')
    a('s_barrier')
    a('s_cmp_lg_u32 s3, 0')
    a('s_cbranch_scc1 L1_w1_done')
    for w in range(4):
        a(f'ds_read_b32 v{12+w}, v4 offset:{40960 + w*256}')
    a('v_and_b32 v1, 35, v0')
    a('v_bfe_u32 v2, v0, 2, 1')
    a('v_lshl_add_u32 v1, v2, 4, v1')
    a('v_bfe_u32 v2, v0, 3, 2')
    a('v_lshl_add_u32 v1, v2, 2, v1')
    a('v_lshlrev_b32 v1, 3, v1')
    a('s_lshl_b32 s27, s14, 9')
    a('s_lshl_b32 s25, s15, 2')
    a('s_add_u32 s27, s27, s25')
    a.wait(lg='all')
    a('v_add_f32 v12, v12, v13')
    a('v_add_f32 v14, v14, v15')
    a('v_add_f32 v12, v12, v14')
    a('buffer_store_dword v12, v1, s[32:35], s27 offen')
    a.label('L1_w1_done')
    if opt.stamps:
        a.wait(vm='all'); stamp(a, 1, 0); stamp_flush(a, 2, 0, 6, 3)

def k1_w2(a):
    nt = ' nt' if opt.w_nt else ''
    a('s_sub_u32 s13, s13, 54')
    a('s_lshl_b32 s13, s13, 2')
    a('s_add_u32 s13, s13, s3')
    a('s_lshl_b32 s13, s13, 2')
    a('v_lshrrev_b32 v1, 3, v0')
    a('v_and_b32 v4, 7, v0')
    a('v_lshlrev_b32 v4, 4, v4')
    a('s_movk_i32 s19, 1280')
    a('v_mad_u32_u24 v2, v1, s19, v4')
    a('s_lshl_b32 s24, s3, 14')
    a.wait(lg='all')
    srd(a, 20, 10, 0, D * F * 2)
    for i in range(4):
        a(f's_add_u32 s14, s13, {i}')
        a('s_mul_i32 s15, s14, 6554')
        a('s_lshr_b32 s15, s15, 16')
        a('s_mul_i32 s16, s15, 10')
        a('s_sub_u32 s16, s14, s16')
        a('s_mul_i32 s15, s15, 40960')
        a('s_lshl_b32 s16, s16, 7')
        a('s_add_u32 s15, s15, s16')
        for jx in range(4):
            a(f's_add_u32 m0, s24, {i*4096 + jx*1024}')
            a(f's_add_u32 s25, s15, {jx*8*1280}')
            a(f'buffer_load_dwordx4 v2, s[20:23], s25 offen{nt} lds', tag=f'd{i}')
    srd(a, 28, 6, W2F_OFF, W2F_SZ)
    a('v_bfe_u32 v1, v0, 2, 2')
    a('v_lshrrev_b32 v4, 4, v0')
    a('v_lshl_add_u32 v1, v4, 3, v1')
    a('v_lshlrev_b32 v1, 7, v1')
    a('v_and_b32 v4, 3, v0')
    a('v_lshl_add_u32 v1, v4, 3, v1')
    a('v_add_u32 v1, s24, v1')
    a('v_lshlrev_b32 v5, 4, v0')
    a('s_lshl_b32 s26, s13, 12')
    st = (' ' + opt.wf_store) if opt.wf_store else ''
    for i in range(4):
        a.wait(vm=f'd{i}')
        for T in range(4):
            r = 12 + 16 * i + 4 * T
            a(f'ds_read_b64_tr_b16 v[{r}:{r+1}], v1 offset:{i*4096 + T*32}', tag=f't{i}{T}')
            a(f'ds_read_b64_tr_b16 v[{r+2}:{r+3}], v1 offset:{i*4096 + T*32 + 512}', tag=f't{i}{T}')
        a(f's_add_u32 s27, s26, {i*4096}')
        for T in range(4):
            r = 12 + 16 * i + 4 * T
            a.wait(lg=f't{i}{T}')
            a(f'buffer_store_dwordx4 v[{r}:{r+3}], v5, s[28:31], s27 offen offset:{T*1024}{st}', tag='st')
    if opt.stamps:
        a.wait(vm='all'); stamp(a, 1, 0); stamp_flush(a, 2, 0, 6, 3)

def k1_fft(a):
    nt = ' nt' if opt.x_nt else ''
    VOFF = 4
    ADR = 8
    BF = 24
    ACC = 104
    AF = 168
    M1 = 200
    T = 232
    a('s_sub_u32 s13, s13, 1')
    a('s_and_b32 s14, s13, 3')
    a('s_lshl_b32 s12, s12, 2')
    a('s_add_u32 s12, s12, s14')
    a('s_lshr_b32 s13, s13, 2')
    a('v_lshrrev_b32 v1, 4, v0')
    a('v_and_b32 v2, 15, v0')
    a('s_lshl_b32 s14, s3, 9')
    a('s_add_u32 s14, s14, s12')
    a('s_mul_i32 s14, s14, 1280')
    a('v_mul_u32_u24 v3, 40960, v1')
    a(f'v_xor_b32 v{T}, v2, v1')
    for i in range(4):
        if i: a(f'v_xor_b32 v{T+1}, {4*i}, v{T}')
        a(f'v_lshl_add_u32 v{VOFF+i}, v{T+1 if i else T}, 4, v3')
        if i: a(f'v_add_u32 v{VOFF+i}, {i*4*40960}, v{VOFF+i}')
    a('s_mul_i32 s15, s3, 20480')
    a.wait(lg='all')
    srd(a, 16, 4, 0, S * D * 2)
    for c in range(5):
        for i in range(4):
            a(f's_add_u32 m0, s15, {c*4096 + i*1024 - 256*c}')
            a('s_nop 0')
            a(f'buffer_load_dwordx4 v{VOFF+i}, s[16:19], s14 offen offset:{256*c}{nt} lds', tag=f'x{c}')
    stamp(a, 1, 0)
    srd(a, 20, 6, Z_OFF, Z_SZ)
    a(f'v_lshlrev_b32 v{T}, 1, v1')
    a(f'v_xor_b32 v{T}, v{T}, v2')
    a(f'v_lshlrev_b32 v{T}, 4, v{T}')
    a(f'v_lshl_add_u32 v{T}, v2, 8, v{T}')
    for sl in range(4):
        a(f's_add_u32 s24, s3, {sl}')
        a('s_and_b32 s24, s24, 3')
        a(f's_lshl_b32 s{28+sl}, s24, 9')
        a(f's_lshl_b32 s{32+sl}, s24, 6')
        a('s_mul_i32 s24, s24, 20480')
        a(f'v_add_u32 v{ADR+4*sl}, s24, v{T}')
        for k in range(1, 4):
            a(f'v_xor_b32 v{ADR+4*sl+k}, {(8*(k>>1) + (k&1))*16}, v{ADR+4*sl}')
    a('s_lshl_b32 s24, s13, 6')
    a('s_lshl_b32 s25, s3, 4')
    a('s_add_u32 s24, s24, s25')
    a('v_add_u32 v3, s24, v2')
    a(f'v_mov_b32 v{T}, 320')
    a('v_cmp_eq_u32 vcc, 0, v3')
    a(f'v_cndmask_b32 v{T}, v3, v{T}, vcc')
    SG = T + 1; TH = T + 2; KP = T + 3; KN = T + 4; PH0 = T + 5
    a(f'v_lshlrev_b32 v{SG}, 31, v{T}')
    a(f'v_or_b32 v{SG}, 1.0, v{SG}')
    a(f'v_cvt_f32_u32 v{TH}, v{T}')
    a(f'v_mul_f32 v{TH}, {f32(1/640)}, v{TH}')
    a(f'v_cos_f32 v{KP}, v{TH}')
    a(f'v_cvt_f32_u32 v{PH0}, v1')
    a(f'v_mul_f32 v{PH0}, {f32(16.0)}, v{PH0}')
    a(f'v_add_f32 v{KP}, v{KP}, v{KP}')
    a(f'v_sub_f32 v{KN}, 0, v{KP}')
    a('s_mul_i32 s24, s12, 1280')
    a('v_lshlrev_b32 v3, 2, v3')
    a('v_add_u32 v3, s24, v3')
    a('s_mov_b32 s24, 327680')
    a('v_mad_u32_u24 v3, v1, s24, v3')
    U = T + 6
    for sc in range(5):
        a(f'v_add_f32 v{U+4}, {f32(64.0*sc)}, v{PH0}')
        a(f'v_mul_f32 v{U+4}, v{U+4}, v{TH}')
        a(f'v_fract_f32 v{U+4}, v{U+4}')
        a(f'v_add_f32 v{U+5}, v{U+4}, v{TH}')
        a(f'v_cos_f32 v{U}, v{U+4}')
        a(f'v_cos_f32 v{U+1}, v{U+5}')
        a(f'v_sin_f32 v{U+2}, v{U+4}')
        a(f'v_sin_f32 v{U+3}, v{U+5}')
        for p in range(8):
            ks = 2 * sc + (p >> 2); q = p & 3
            sa = '-' if p & 1 else ''
            sb = '' if p & 1 else '-'
            if p:
                a(f'v_fmac_f32 v{U}, v{KN}, v{U+1}')
                a(f'v_fmac_f32 v{U+2}, v{KN}, v{U+3}')
                a(f'v_fmac_f32 v{U+1}, v{KP}, v{U}')
                a(f'v_fmac_f32 v{U+3}, v{KP}, v{U+2}')
            a(f'v_cvt_pk_bf16_f32 v{BF+ks*4+q}, {sa}v{U}, {sa}v{U+1}')
            a(f'v_cvt_pk_bf16_f32 v{BF+40+ks*4+q}, {sb}v{U+2}, {sb}v{U+3}')
    SF = AF
    T1 = AF + 8
    W = AF + 12
    a(f'v_lshlrev_b32 v{W}, 7, v1')
    a(f'v_add_u32 v{W}, s12, v{W}')
    for sl in range(2):
        a(f'v_add_u32 v{W+1}, s{28+sl}, v{W}')
        a(f'v_cvt_f32_u32 v{W+1}, v{W+1}')
        a(f'v_mul_f32 v{SF+4*sl}, {f32(1/2048)}, v{W+1}')
        for i in range(1, 4):
            a(f'v_add_f32 v{SF+4*sl+i}, {f32(32*i/2048)}, v{SF+4*sl}')
    a(f'v_lshlrev_b32 v{W}, 1, v2')
    a(f'v_cvt_f32_u32 v{T1}, v{W}')
    a(f'v_add_f32 v{T1+1}, {f32(32.0)}, v{T1}')
    a(f'v_add_f32 v{T1+2}, 1.0, v{T1}')
    a(f'v_add_f32 v{T1+3}, {f32(33.0)}, v{T1}')
    for tau in range(4):
        for q in range(4):
            a(f'v_mul_f32 v{W}, v{T1+tau}, v{SF+2*q}')
            a(f'v_mul_f32 v{W+1}, v{T1+tau}, v{SF+2*q+1}')
            a(f'v_cos_f32 v{W+2}, v{W}')
            a(f'v_cos_f32 v{W+3}, v{W+1}')
            a(f'v_sin_f32 v{W+4}, v{W}')
            a(f'v_sin_f32 v{W+5}, v{W+1}')
            a(f'v_cvt_pk_bf16_f32 v{M1+tau*8+q}, v{W+2}, v{W+3}')
            a(f'v_cvt_pk_bf16_f32 v{M1+tau*8+4+q}, v{W+4}, v{W+5}')
    SUM = T + 2; SQ = T + 3; ONE = T + 4
    a(f'v_mov_b32 v{SUM}, 0')
    a(f'v_mov_b32 v{SQ}, 0')
    a(f'v_mov_b32 v{ONE}, 0x3f803f80')
    stamp(a, 2, 0)
    def reads(ks):
        c, k = ks >> 2, ks & 3
        for sl in range(4):
            r = AF + (ks & 1) * 16 + 4 * sl
            a(f'ds_read_b128 v[{r}:{r+3}], v{ADR+4*sl+k} offset:{c*4096}', tag=f'a{ks}_{sl}')
    for ks in range(20):
        c, k = ks >> 2, ks & 3
        if k == 0:
            a.wait(vm=f'x{c}')
            a('s_barrier')
            reads(ks)
        if k < 3: reads(ks + 1)
        half, kb = ks // 10, ks % 10
        for sl in range(4):
            r = AF + (ks & 1) * 16 + 4 * sl
            a.wait(lg=f'a{ks}_{sl}')
            for t in range(2):
                acc = ACC + half * 32 + t * 16 + sl * 4
                cin = '0' if kb == 0 else f'v[{acc}:{acc+3}]'
                b = BF + t * 40 + kb * 4
                a(f'v_mfma_f32_16x16x32_bf16 v[{acc}:{acc+3}], v[{r}:{r+3}], v[{b}:{b+3}], {cin}')
                r0 = AF + (ks & 1) * 16 + sl
                if t == 0: a(f'v_dot2c_f32_bf16 v{SUM}, v{r0}, v{ONE}')
                else: a(f'v_dot2c_f32_bf16 v{SQ}, v{r0}, v{r0}')
    stamp(a, 3, 0)
    X = T + 5
    a(f'v_mov_b32 v{X}, v{SUM}')
    a(f'v_mov_b32 v{X+1}, v{SQ}')
    a(f'v_permlane32_swap_b32 v{SUM}, v{X}')
    a(f'v_permlane32_swap_b32 v{SQ}, v{X+1}')
    a(f'v_add_f32 v{SUM}, v{SUM}, v{X}')
    a(f'v_add_f32 v{SQ}, v{SQ}, v{X+1}')
    a(f'v_mov_b32 v{X}, v{SUM}')
    a(f'v_mov_b32 v{X+1}, v{SQ}')
    a(f'v_permlane16_swap_b32 v{SUM}, v{X}')
    a(f'v_permlane16_swap_b32 v{SQ}, v{X+1}')
    a(f'v_add_f32 v{SUM}, v{SUM}, v{X}')
    a(f'v_add_f32 v{SQ}, v{SQ}, v{X+1}')
    a(f'v_mul_f32 v{SUM}, {f32(1/640)}, v{SUM}')
    a(f'v_mul_f32 v{SQ}, {f32(1/640)}, v{SQ}')
    a(f'v_fma_f32 v{SQ}, -v{SUM}, v{SUM}, v{SQ}')
    a(f'v_max_f32 v{SQ}, 0, v{SQ}')
    if opt.mimic1:
        a(f'v_cvt_pk_bf16_f32 v{SQ}, v{SQ}, v{SQ}')
        a(f'v_and_b32 v{SQ}, 0xffff0000, v{SQ}')
        a(f'v_add_f32 v{SQ}, {f32(1e-5)}, v{SQ}')
        a(f'v_cvt_pk_bf16_f32 v{SQ}, v{SQ}, v{SQ}')
        a(f'v_and_b32 v{SQ}, 0xffff0000, v{SQ}')
        a(f'v_sqrt_f32 v{SQ}, v{SQ}')
        a(f'v_cvt_pk_bf16_f32 v{SQ}, v{SQ}, v{SQ}')
        a(f'v_and_b32 v{SQ}, 0xffff0000, v{SQ}')
        a(f'v_rcp_f32 v{SQ}, v{SQ}')
    else:
        a(f'v_add_f32 v{SQ}, {f32(1e-5)}, v{SQ}')
        a(f'v_rsq_f32 v{SQ}, v{SQ}')
    a(f'v_lshlrev_b32 v{X}, 2, v2')
    a(f'v_add_u32 v{X}, s32, v{X}')
    a(f'v_add_u32 v{X}, 81920, v{X}')
    a(f'ds_write_b32 v{X}, v{SQ}')
    for i in range(32):
        a(f'v_fmac_f32 v{ACC+i}, v{SG}, v{ACC+32+i}')
    a(f'v_lshlrev_b32 v{X}, 4, v1')
    a(f'v_add_u32 v{X}, 81920, v{X}')
    for sl in range(4):
        a(f'v_add_u32 v{X+1+sl}, s{32+sl}, v{X}')
    a.wait(lg='all')
    a('s_barrier')
    RS = AF
    for sl in (0, 2, 1, 3):
        a(f'ds_read_b128 v[{RS+4*sl}:{RS+4*sl+3}], v{X+1+sl}', tag=f'rs{sl}')
    P = ACC + 32
    CF = BF
    for sl in range(2):
        a.wait(lg=[f'rs{sl}', f'rs{sl+2}'])
        for t in range(2):
            for r in range(4):
                lo = ACC + t * 16 + sl * 4 + r; hi = lo + 8
                a(f'v_mul_f32 v{P+r}, v{RS+4*sl+r}, v{lo}')
            for r in range(4):
                lo = ACC + t * 16 + sl * 4 + r; hi = lo + 8
                a(f'v_fma_f32 v{lo}, v{RS+4*sl+8+r}, v{hi}, v{P+r}')
                a(f'v_fma_f32 v{hi}, -v{RS+4*sl+8+r}, v{hi}, v{P+r}')
            for par in range(2):
                for h in range(2):
                    src = ACC + t * 16 + (sl + 2 * par) * 4 + 2 * h
                    a(f'v_cvt_pk_bf16_f32 v{CF+par*12+t*4+sl*2+h}, v{src}, v{src+1}')
                    if t == 0:
                        a(f'v_cvt_pk_bf16_f32 v{CF+par*12+8+sl*2+h}, -v{src}, -v{src+1}')
    ZD = BF + 24
    for step in range(2):
        for tau in range(4):
            par = tau >> 1
            C = M1 + tau * 8; Sx = C + 4
            fa = CF + par * 12; fb = fa + 4; fn = fa + 8
            zr = ZD + tau * 8; zi = zr + 4
            if step == 0:
                a(f'v_mfma_f32_16x16x32_bf16 v[{zr}:{zr+3}], v[{C}:{C+3}], v[{fa}:{fa+3}], 0')
                a(f'v_mfma_f32_16x16x32_bf16 v[{zi}:{zi+3}], v[{C}:{C+3}], v[{fb}:{fb+3}], 0')
            else:
                a(f'v_mfma_f32_16x16x32_bf16 v[{zr}:{zr+3}], v[{Sx}:{Sx+3}], v[{fb}:{fb+3}], v[{zr}:{zr+3}]')
                a(f'v_mfma_f32_16x16x32_bf16 v[{zi}:{zi+3}], v[{Sx}:{Sx+3}], v[{fn}:{fn+3}], v[{zi}:{zi+3}]')
    st = (' ' + opt.z_store) if opt.z_store else ''
    for tau in range(4):
        zr = ZD + tau * 8; zi = zr + 4
        for r in range(4):
            a(f's_mov_b32 s24, {(32*(tau&1) + 2*r + (tau>>1))*40960}')
            a(f'v_cvt_pk_bf16_f32 v{ACC+tau*4+r}, v{zr+r}, v{zi+r}')
            a(f'buffer_store_dword v{ACC+tau*4+r}, v3, s[20:23], s24 offen{st}')
    if opt.stamps:
        stamp(a, 4, 0); a.wait(vm='all'); stamp(a, 5, 0); stamp_flush(a, 6, 0, 6, 3)

def kd(name, vgpr, acc, sgpr=102):
    return f""".p2align 6
.amdhsa_kernel {name}
  .amdhsa_next_free_vgpr {vgpr}
  .amdhsa_next_free_sgpr {sgpr}
  .amdhsa_accum_offset {acc}
  .amdhsa_group_segment_fixed_size 0
  .amdhsa_kernarg_size 104
  .amdhsa_user_sgpr_count 2
  .amdhsa_user_sgpr_kernarg_segment_ptr 1
  .amdhsa_system_sgpr_workgroup_id_x 1
  .amdhsa_float_denorm_mode_32 3
.end_amdhsa_kernel
"""

def build(with_k2=True):
    from gen2 import k2, K2_LDS
    hdr = open('cdna_kernels/' + NAME + '.s.ref').read().split('; Override launch')[0]
    out = hdr
    out += f'; @launch kernel=k1_kernel grid=(256,1,1) block=(256,1,1) lds={K1_LDS}\n'
    if with_k2:
        out += f'; @launch kernel=k2_kernel grid=(256,1,1) block=(256,1,1) lds={K2_LDS}\n'
    out += '.amdgcn_target "amdgcn-amd-amdhsa--gfx950"\n.text\n'
    a = Asm()
    a.raw('.globl k1_kernel\n.p2align 8\n.type k1_kernel,@function')
    k1(a)
    if with_k2:
        a.newpath()
        a.raw('.globl k2_kernel\n.p2align 8\n.type k2_kernel,@function')
        k2(a)
    a.raw('L_code_end:')
    out += a.text()
    out += '.section .rodata,"a"\n'
    out += kd('k1_kernel', 256, 256)
    if with_k2:
        out += kd('k2_kernel', 512, 256)
    return out

if __name__ == '__main__':
    import gen
    outp = sys.argv[1]
    for kv in sys.argv[2:]:
        k, v = kv.split('=')
        cur = getattr(gen.opt, k)
        if isinstance(cur, bool): v = v in ('1', 'True', 'true')
        elif isinstance(cur, int): v = int(v)
        setattr(gen.opt, k, v)
    open(outp, 'w').write(gen.build(with_k2=not getattr(gen.opt, 'only1', False)))
```

```python
import gen, sys, re
from gen2 import K2_LDS
for kv in sys.argv[2:]:
    k, v = kv.split('=')
    cur = getattr(gen.opt, k)
    if isinstance(cur, bool): v = v in ('1', 'True', 'true')
    elif isinstance(cur, int): v = int(v)
    setattr(gen.opt, k, v)
s = gen.build()
N = gen.NAME + '_kernel'
lines = s.split('\n')
lines = [l for l in lines if 'kernel=k2_kernel' not in l]
s = '\n'.join(lines)
s = re.sub(r'; @launch kernel=k1_kernel.*', f'; @launch grid=(256,1,1) block=(256,1,1) lds={K2_LDS}', s)
head, rest = s.split('.globl k2_kernel\n.p2align 8\n.type k2_kernel,@function\n')
k1 = head
k1 = k1.replace('L1_end:\n    s_endpgm', '    s_branch L_gbar\nL1_end:\n    s_endpgm_KEEP')
k1 = k1.replace('    s_endpgm\n', '    s_branch L_gbar\n').replace('s_endpgm_KEEP', 's_endpgm')
gbar = '''L_gbar:
    s_waitcnt vmcnt(0) lgkmcnt(0)
    s_barrier
    s_cmp_lg_u32 s3, 0
    s_cbranch_scc1 L_gb2
    s_load_dwordx2 s[12:13], s[0:1], 88
    buffer_wbl2 sc1
    s_waitcnt vmcnt(0) lgkmcnt(0)
    s_mov_b32 s14, 256
    s_mov_b32 s15, 0x20000
    v_mov_b32 v1, 0
    v_mov_b32 v2, 1
    s_mov_b64 exec, 1
    buffer_atomic_add v2, v1, s[12:15], 0 offen sc1
    s_mov_b32 s16, 0
L_gb1:
    buffer_load_dword v3, v1, s[12:15], 0 offen sc1
    s_waitcnt vmcnt(0)
    v_readfirstlane_b32 s17, v3
    s_add_u32 s16, s16, 1
    s_cmp_ge_u32 s16, 0x40000
    s_cbranch_scc1 L_gb3
    s_sleep 1
    s_cmp_lt_u32 s17, 256
    s_cbranch_scc1 L_gb1
L_gb3:
    s_mov_b64 exec, -1
    buffer_inv sc1
    s_waitcnt vmcnt(0)
L_gb2:
    s_barrier
    v_mbcnt_lo_u32_b32 v0, -1, 0
    v_mbcnt_hi_u32_b32 v0, -1, v0
    s_lshl_b32 s16, s3, 6
    v_add_u32 v0, s16, v0
    s_nop 4
'''
s = k1 + gbar + rest.replace('k2_kernel:', 'L_k2:')
s = s.replace('k1_kernel', N)
s = s.split('.section .rodata')[0] + '.section .rodata,"a"\n' + gen.kd(N, 512, 256)
open(sys.argv[1], 'w').write(s)
```

```python
import re

TRANS = ('v_exp_f32', 'v_log_f32', 'v_rcp_f32', 'v_rsq_f32', 'v_sqrt_f32', 'v_sin_f32', 'v_cos_f32', 'v_rcp_iflag_f32')

def regs_of(tok):
    tok = tok.strip()
    if tok.startswith('-'):
        tok = tok[1:]
    m = re.fullmatch(r'abs\((.*)\)', tok)
    if m: tok = m.group(1)
    m = re.fullmatch(r'\|(.*)\|', tok)
    if m: tok = m.group(1)
    m = re.fullmatch(r'([vas])(\d+)', tok)
    if m: return {tok}
    m = re.fullmatch(r'([vas])\[(\d+):(\d+)\]', tok)
    if m: return {f'{m.group(1)}{i}' for i in range(int(m.group(2)), int(m.group(3)) + 1)}
    if tok in ('vcc', 'exec', 'm0', 'scc'): return {tok}
    if tok in ('vcc_lo', 'vcc_hi'): return {'vcc'}
    if tok in ('exec_lo', 'exec_hi'): return {'exec'}
    return set()

def split_ops(s):
    out, depth, cur = [], 0, ''
    for ch in s:
        if ch in '[(': depth += 1
        if ch in '])': depth -= 1
        if ch == ',' and depth == 0:
            out.append(cur.strip()); cur = ''
        else:
            cur += ch
    if cur.strip(): out.append(cur.strip())
    return out

class Ins:
    def __init__(self, text):
        self.text = text
        t = text.split(';')[0].strip()
        parts = t.split(None, 1)
        self.op = parts[0]
        rest = parts[1] if len(parts) > 1 else ''
        ops = split_ops(rest)
        self.mods = ''
        if ops:
            lp = ops[-1].split(None, 1)
            ops[-1] = lp[0]
            self.mods = lp[1] if len(lp) > 1 else ''
        self.ops = ops
        op = self.op
        R = lambda i: regs_of(ops[i]) if i < len(ops) else set()
        allr = lambda a: set().union(*[regs_of(o) for o in ops[a:]]) if len(ops) > a else set()
        self.kind = 'other'; self.rd = set(); self.wr = set(); self.passes = 0
        self.srcc = set(); self.srcab = set(); self.data = set()
        self.states = 1
        if op == 's_nop':
            self.kind = 'nop'; self.states = int(ops[0], 0) + 1
        elif op.startswith('v_mfma'):
            self.kind = 'mfma'; self.passes = 8 if '32x32x16' in op else 4
            assert '32x32x16' in op or '16x16x32' in op, op
            self.wr = R(0); self.srcab = R(1) | R(2); self.srcc = R(3); self.rd = self.srcab | self.srcc
        elif op.startswith('buffer_load') or op.startswith('global_load'):
            lds = ' lds' in (' ' + self.mods) or '_lds_' in op
            self.kind = 'vload'
            if lds:
                self.rd = allr(0) | {'m0'}; self.lds = True
            else:
                self.wr = R(0); self.rd = allr(1)
        elif op.startswith('buffer_store'):
            self.kind = 'vstore'; self.rd = allr(0); self.data = R(0)
        elif op.startswith('global_store'):
            self.kind = 'vstore'; self.rd = allr(0); self.data = R(1)
        elif op.startswith('buffer_atomic') or op.startswith('global_atomic'):
            self.kind = 'vstore'; self.rd = allr(0)
        elif op.startswith('ds_read'):
            self.kind = 'ds'; self.wr = R(0); self.rd = allr(1)
            if 'd16' in op: self.rd |= R(0)
        elif op.startswith('ds_write') or op.startswith('ds_add'):
            self.kind = 'ds'; self.rd = allr(0)
        elif op.startswith('ds_'):
            self.kind = 'ds'; self.wr = R(0); self.rd = allr(1)
        elif op.startswith('v_'):
            self.kind = 'valu'
            base = op.replace('_e32', '').replace('_e64', '')
            self.trans = base in TRANS
            self.dot = base.startswith('v_dot')
            self.dpp = '_dpp' in op
            self.perml = base.startswith('v_permlane')
            self.rdlane = base in ('v_readfirstlane_b32', 'v_readlane_b32')
            if self.perml or base == 'v_swap_b32':
                self.wr = R(0) | R(1); self.rd = R(0) | R(1)
            elif base.startswith('v_add_co') or base.startswith('v_sub_co') or base.startswith('v_addc_co'):
                self.wr = R(0) | R(1); self.rd = allr(2)
            else:
                self.wr = R(0); self.rd = allr(1)
                if base.startswith('v_fmac') or base.startswith('v_dot2c') or base.startswith('v_writelane') or self.dpp:
                    self.rd |= R(0)
                if base.startswith('v_cmpx'): self.wr |= {'exec'}
        elif op.startswith('s_load') or op.startswith('s_memrealtime') or op.startswith('s_memtime'):
            self.kind = 'smem'; self.wr = R(0); self.rd = allr(1)
        elif op.startswith('s_'):
            self.kind = 'salu'
            if op.startswith('s_cmp') or op.startswith('s_cbranch') or op in ('s_branch', 's_barrier', 's_waitcnt', 's_endpgm', 's_sleep', 's_setprio'):
                self.rd = allr(0)
            else:
                self.wr = R(0); self.rd = allr(1)
                if 'saveexec' in op: self.wr |= {'exec'}
        else:
            raise ValueError('unknown op ' + text)

def isv(r): return r[0] in 'va' and r != 'vcc'
def iss(r): return (r[0] == 's' and r != 'scc') or r == 'vcc'

def need(p, c):
    n = 0
    if p.kind == 'valu':
        wv = {r for r in p.wr if isv(r)}; ws = {r for r in p.wr if iss(r)}
        if c.kind == 'mfma' and wv & c.rd: n = max(n, 3 if p.dot else 2)
        if c.kind == 'valu':
            if p.trans and not c.trans and wv & c.rd: n = max(n, 1)
            if p.trans and c.trans and wv & c.rd: n = max(n, 1)
            if c.perml and wv & c.rd: n = max(n, 2)
            if c.dpp and wv & c.rd: n = max(n, 2)
            if c.rdlane and wv & c.rd: n = max(n, 1)
            if ws & c.rd: n = max(n, 4 if c.rdlane else 2)
            if p.dot:
                same = p.op == c.op
                if same:
                    ab = regs_of(c.ops[1]) | regs_of(c.ops[2])
                    if wv & ab: n = max(n, 3)
                elif wv & (c.rd | c.wr): n = max(n, 3)
            if 'exec' in p.wr and (c.dpp or c.perml or c.rdlane): n = max(n, 5)
        if p.dot and c.kind in ('vload', 'vstore', 'ds') and wv & c.rd: n = max(n, 3)
        if c.kind in ('vload', 'vstore') and ws & c.rd: n = max(n, 5)
        if c.kind == 'salu' and ws & c.rd: n = max(n, 2)
        if 'exec' in p.wr and c.kind == 'mfma': n = max(n, 4)
    if p.kind == 'salu' and 'm0' in p.wr and c.kind == 'vload' and 'm0' in c.rd: n = max(n, 1)
    if p.kind == 'mfma':
        big = p.passes == 8
        if c.kind == 'mfma':
            if p.wr & c.srcab: n = max(n, 12 if big else 8)
            if p.wr & c.srcc:
                if not (p.wr == c.srcc and p.passes == c.passes): n = max(n, 10 if big else 6)
            elif p.wr & c.wr:
                n = max(n, 10 if big else 6)
        elif c.kind in ('valu', 'vload', 'vstore', 'ds'):
            if p.wr & (c.rd | c.wr): n = max(n, 12 if big else 8)
            if c.kind == 'valu' and p.srcc & c.wr: n = max(n, 7 if big else 3)
    if p.kind == 'vstore' and len(p.data) >= 3 and p.data & c.wr:
        n = max(n, 2)
    if p.kind == 'ds' and p.op in ('ds_write_b128', 'ds_write_b96') and c.kind == 'valu' and (p.rd & c.wr):
        n = max(n, 1)
    return n

class Asm:
    def __init__(self):
        self.lines = []
        self.hist = []
        self.vm = []
        self.lg = []
        self.smem = False
        self.nins = 0
        self.t = 0.0; self.tm = 0.0
        self.q = []
        self.interval = 64
        self.next_t = 0.0
        self.pumping = False
        self._inpump = False
        self.lead = 0
        self.items = []
    def raw(self, s):
        self.lines.append(s)
    def comment(self, s):
        self.lines.append('    ; ' + s)
    def label(self, name, reset=True):
        self.lines.append(name + ':')
    def newpath(self):
        self.hist = []; self.vm = []; self.lg = []; self.smem = False
    def __call__(self, text, tag=None):
        for t in text.split('\n'):
            t = t.strip()
            if not t or t.startswith(';'): continue
            self._emit(t, tag)
    def _emit(self, t, tag):
        ins = Ins(t)
        dist = 0; req = 0
        for p in reversed(self.hist):
            n = need(p, ins)
            if n - dist > req: req = n - dist
            dist += p.states
            if dist > 24: break
        while req > 0:
            k = min(req, 16)
            nop = Ins(f's_nop {k-1}')
            self.lines.append(f'    s_nop {k-1}')
            self.hist.append(nop); req -= k; self._time(nop)
        self.lines.append('    ' + t)
        self.hist.append(ins); self.nins += 1
        if len(self.hist) > 64: self.hist = self.hist[-48:]
        if ins.kind in ('vload', 'vstore'):
            self.vm.append(tag)
        elif ins.kind == 'ds':
            self.lg.append(tag)
        elif ins.kind == 'smem':
            self.smem = True
        self._time(ins)
        if self.pumping and not self._inpump and ins.kind in ('valu', 'mfma', 'ds'): self.pump()
    def _time(self, ins):
        if ins.kind == 'mfma':
            st = max(self.t, self.tm)
            self.tm = st + 4 * ins.passes
            self.t = st + 8
        elif ins.kind == 'valu':
            pk = ins.dot or ins.op.startswith('v_pk_')
            if pk: self.t = max(self.t, self.tm)
            self.t += 8 if (ins.trans or ins.op == 'v_swap_b32') else 4.6
        elif ins.kind == 'ds':
            self.t += 30 if ins.op == 'ds_write_b128' else (12 if ins.op.startswith('ds_write') else 5)
        elif ins.kind == 'nop':
            self.t += 4 * ins.states
        elif ins.kind == 'vstore':
            self.t += 5
            self.next_t = max(self.next_t, self.t) + self.interval
        else:
            self.t += 4
    def pump(self, force=0):
        self._inpump = True
        while self.q and (force > 0 or self.t >= self.next_t):
            fn, ready, slots = self.q[0]
            if ready is not None and not ready(): break
            self.q.pop(0)
            fn()
            self.items.append(getattr(fn, 'tag', None))
            if force > 0:
                force -= 1
                self.t = max(self.t, self.next_t)
            self.next_t = max(self.next_t, self.t - 0.5 * self.interval) + self.interval * slots
        self._inpump = False
    def snapshot(self):
        return (list(self.hist), list(self.vm), list(self.lg), self.smem, self.t, self.tm, self.next_t, list(self.items))
    def restore(self, s):
        self.hist, self.vm, self.lg = list(s[0]), list(s[1]), list(s[2])
        self.smem, self.t, self.tm, self.next_t = s[3:7]; self.items = list(s[7])
    def _cnt(self, q, tags):
        last = -1
        for i, x in enumerate(q):
            if x in tags: last = i
        return last
    def wait(self, vm=None, lg=None):
        parts = []
        if vm is not None and vm != 'all':
            tags = vm if isinstance(vm, (list, tuple, set)) else [vm]
            while any(getattr(it[0], 'tag', None) in tags for it in self.q):
                n0 = len(self.q); self.pump(force=1)
                assert len(self.q) < n0, f'queue blocked while waiting for {tags}'
                self.forced = getattr(self, 'forced', 0) + 1
            last = self._cnt(self.items, tags)
            while last >= 0 and self._cnt(self.vm, tags) >= 0 and self.pumping and len(self.items) - 1 - last < self.lead and self.q:
                n0 = len(self.q); self.pump(force=1)
                if len(self.q) == n0: break
        if vm is not None:
            if vm == 'all': n = 0; self.vm = []
            else:
                tags = vm if isinstance(vm, (list, tuple, set)) else [vm]
                last = self._cnt(self.vm, tags)
                if last >= 0:
                    n = len(self.vm) - 1 - last; self.vm = self.vm[last + 1:]
                    n = min(n, 63)
                else: n = None
            if n is not None: parts.append(f'vmcnt({n})')
        if lg is not None:
            if lg == 'all' or self.smem: n = 0; self.lg = []; self.smem = False
            else:
                tags = lg if isinstance(lg, (list, tuple, set)) else [lg]
                last = self._cnt(self.lg, tags)
                if last >= 0:
                    n = len(self.lg) - 1 - last; self.lg = self.lg[last + 1:]
                    n = min(n, 15)
                else: n = None
            if n is not None: parts.append(f'lgkmcnt({n})')
        if parts:
            self('s_waitcnt ' + ' '.join(parts))
    def text(self):
        return '\n'.join(self.lines) + '\n'

def vr(a, n=1, f='v'):
    return f'{f}{a}' if n == 1 else f'{f}[{a}:{a+n-1}]'

class Reg:
    def __init__(self, idx): self.idx = idx
    def r(self, off=0, n=1):
        i = self.idx + off
        if i < 256:
            assert i + n <= 256
            return vr(i, n, 'v')
        return vr(i - 256, n, 'a')

def ur(i, n=1):
    if i < 256:
        assert i + n <= 256, (i, n)
        return vr(i, n, 'v')
    return vr(i - 256, n, 'a')
```

```python
from asmlib import *
from gen import *
import gen

L_RED = 0
L_XU = 20480
L_HU = 61440
L_HL = 102400
L_ST = 143360
L_SP = 144896
L_TR = 148992
K2_LDS = L_TR + 4 * 2816
A0 = 256

class Pool:
    def __init__(self): self.free = []; self.where = {}
    def add(self, lo, hi):
        self.free += list(range(lo, hi, 4))
    def ok(self): return bool(self.free)
    def take(self, key):
        r = self.free.pop(0); self.where[key] = r; return r
    def give(self, key): self.free.append(self.where[key])

def k2(a):
    opt = gen.opt
    ZR = 32; XB = [112, 132]; HB = 160; ACC1 = 192
    W2C = 160; SEL = 176
    DY = [ACC1, ACC1 + 32]; DD = [ACC1 + 16, ACC1 + 48]
    V_G = 1; V_N = 2; V_L16 = 3; V_L16B = 4
    V_HB = 5
    V_XOFF = 9; V_Z = 10
    V_DA = 14; V_DB = 15; V_MA = 16; V_MB = 17
    V_RD = 18; V_RM = 20
    V_EX = 22; V_EX0 = 23; V_MASK = 24; V_GM = 25
    V_SD = 26; V_SM = 28; V_STD = 30; V_STM = 31; V_ONE = 152
    T0 = ACC1

    a.label('k2_kernel')
    a.t = a.tm = a.next_t = 0.0; a.q = []; a.pumping = False; a.lead = 0; a.items = []
    stamp(a, 0, 1)
    a('s_cmp_ge_u32 s2, 256')
    a('s_cbranch_scc1 L2_end')
    a('s_load_dwordx2 s[4:5], s[0:1], 0')
    a('s_load_dwordx2 s[6:7], s[0:1], 96')
    a('s_load_dwordx4 s[12:15], s[0:1], 72')
    a('v_lshrrev_b32 v1, 6, v0')
    a('v_and_b32 v0, 63, v0')
    a('v_readfirstlane_b32 s3, v1')
    a('s_and_b32 s16, s2, 7')
    a('s_lshr_b32 s17, s2, 3')
    if opt.map2:
        a('s_lshr_b32 s18, s16, 1')
        a('s_lshl_b32 s18, s18, 3')
        a('s_and_b32 s16, s16, 1')
        a('s_lshl_b32 s19, s16, 2')
        a('s_lshr_b32 s16, s17, 2')
        a('s_add_u32 s16, s16, s18')
        a('s_and_b32 s17, s17, 3')
        a('s_add_u32 s17, s17, s19')
    else:
        a('s_lshl_b32 s16, s16, 2')
        a('s_lshr_b32 s18, s17, 3')
        a('s_add_u32 s16, s16, s18')
        a('s_and_b32 s17, s17, 7')
        if opt.xaff: perm32(a, 16, 18)
    a('s_sub_u32 s18, 64, s16')
    a('s_cmp_eq_u32 s16, 0')
    a('s_cselect_b32 s18, 32, s18')
    a('s_cmp_lt_u32 s3, 2')
    a('s_cselect_b32 s19, s16, s18')
    a('s_and_b32 s20, s3, 1')
    a(f'v_lshrrev_b32 v{T0}, 2, v0')
    a(f'v_lshrrev_b32 v{T0+1}, 4, v0')
    a(f'v_xor_b32 v{T0+1}, v{T0+1}, v0')
    a(f'v_and_b32 v{T0+1}, 3, v{T0+1}')
    a(f'v_lshlrev_b32 v{T0+1}, 4, v{T0+1}')
    a('s_mov_b32 s21, 81920')
    a(f'v_mad_u32_u24 v{V_XOFF}, v{T0}, s21, v{T0+1}')
    a('s_lshl_b32 s21, s20, 10')
    a('s_add_u32 s21, s21, s19')
    a('s_mul_i32 s21, s21, 1280')
    a('s_lshl_b32 s22, s3, 10')
    a(f'v_lshrrev_b32 v{V_G}, 5, v0')
    a(f'v_and_b32 v{V_N}, 31, v0')
    PI = T0 + 15
    a(f'v_and_b32 v{PI}, 3, v0')
    a(f'v_bfe_u32 v{T0+1}, v0, 2, 1')
    a(f'v_lshl_add_u32 v{PI}, v{T0+1}, 4, v{PI}')
    a(f'v_bfe_u32 v{T0+1}, v0, 3, 2')
    a(f'v_lshl_add_u32 v{PI}, v{T0+1}, 2, v{PI}')
    a(f'v_mul_u32_u24 v{V_Z}, 5120, v{V_G}')
    a(f'v_lshl_add_u32 v{V_Z}, v{PI}, 2, v{V_Z}')
    a('s_mul_i32 s23, s19, 40960')
    a('s_mul_i32 s24, s20, 640')
    a('s_add_u32 s23, s23, s24')
    a(f's_add_u32 s23, s23, {2048 + Z_OFF}')
    a(f'v_add_u32 v{V_Z}, s23, v{V_Z}')
    for kk in range(1, 4): a(f'v_add_u32 v{V_Z+kk}, {kk*10240}, v{V_Z}')
    a(f'v_lshlrev_b32 v{V_L16}, 4, v0')
    a('s_mul_i32 s26, s17, 7')
    a('s_add_u32 s26, s26, s3')
    a('s_mul_i32 s72, s26, 41984')
    a.wait(lg='all')
    srd(a, 28, 4, 0, S * D * 2)
    srd(a, 36, 6, W1F_OFF, W1F_SZ)

    def xdma(Q, tag):
        base = (L_HL + Q * 4096 if Q < 10 else L_XU + (Q - 10) * 4096) - 64 * Q
        a(f's_add_u32 m0, s22, {base}')
        a(f'buffer_load_dwordx4 v{V_XOFF}, s[28:31], s21 offen offset:{64*Q} lds', tag=tag)
    def zload(i, kk):
        for jj in range(4):
            a(f'global_load_dword v{ZR+16*i+4*kk+jj}, v{V_Z+kk}, s[6:7] offset:{jj*1280 + i*128 - 2048}', tag=f'z{i}')
    st8 = {'w1': None, 'w2': None, 'r': None}
    pool = Pool()
    def w1load(u, ks, P):
        if st8['w1'] != (u, ks // 4):
            a(f's_add_u32 s73, s72, {(ks // 4) * 4096 + u * 4 * 41984}'); st8['w1'] = (u, ks // 4)
        r = P.take(('w1', u, ks))
        a(f'buffer_load_dwordx4 {ur(r, 4)}, v{V_L16}, s[36:39], s73 offen offset:{(ks % 4) * 1024}', tag=f'w1_{u}_{ks}')
    XG = [[0, 1, 18, 19, 4, 5, 14, 15, 10, 11], [6, 7, 12, 13], [2, 3, 16, 17], [8, 9], []]
    q = []
    for i in range(5):
        q += [(tagged(lambda i=i, kk=kk: zload(i, kk), f'z{i}'), None, 1) for kk in range(4)]
        q += [(tagged(lambda Q=Q, i=i: xdma(Q, f'x{i}'), f'x{i}'), None, 1) for Q in XG[i]]
    pool.add(A0, A0 + 256)
    q += [(tagged(lambda ks=ks: w1load(0, ks, pool), f'w1_0_{ks}'), None, 1) for ks in range(41)]
    a.q = q; a.interval = opt.k2_int; a.next_t = a.t
    a.pump(force=6); a.next_t = a.t
    a.pumping = True
    stamp(a, 1, 1)
    srd(a, 56, 12, 0, D * 2)
    srd(a, 60, 6, W2F_OFF, W2F_SZ)
    srd(a, 64, 6, R_OFF, R_SZ)
    srd(a, 68, 6, FLAG_OFF, FLAG_SZ)
    srd(a, 8, 14, 0, S * D * 2)
    a(f'v_cvt_f32_u32 v{T0}, v{V_N}')
    a(f'v_mul_f32 v{T0}, {f32(1/32)}, v{T0}')
    a(f'v_cvt_f32_u32 v{T0+1}, v{V_G}')
    a(f'v_mul_f32 v{T0+1}, 4.0, v{T0+1}')
    for kk in range(4):
        for jj in range(0, 4, 2):
            a(f'v_add_f32 v{T0+2}, {f32(8.0*kk+jj)}, v{T0+1}')
            a(f'v_mul_f32 v{T0+2}, v{T0+2}, v{T0}')
            a(f'v_add_f32 v{T0+3}, v{T0+2}, v{T0}')
            a(f'v_cos_f32 v{T0+4}, v{T0+2}')
            a(f'v_sin_f32 v{T0+5}, v{T0+2}')
            a(f'v_cos_f32 v{T0+6}, v{T0+3}')
            a(f'v_sin_f32 v{T0+7}, v{T0+3}')
            a(f'v_cvt_pk_bf16_f32 v{W2C+4*kk+jj}, v{T0+4}, v{T0+5}')
            a(f'v_cvt_pk_bf16_f32 v{W2C+4*kk+jj+1}, v{T0+6}, v{T0+7}')
    a(f'v_lshlrev_b32 v{T0+3}, 2, v{V_G}')
    for kind in range(2):
        if kind == 0: tg = PI
        else:
            tg = T0 + 4; a(f'v_sub_u32 v{tg}, 32, v{PI}')
        a(f'v_and_b32 v{T0}, 1, v{tg}')
        a(f'v_lshlrev_b32 v{T0}, 4, v{T0}')
        a(f'v_mov_b32 v{T0+1}, 0x3f80')
        a(f'v_lshlrev_b32 v{T0}, v{T0}, v{T0+1}')
        a(f'v_lshrrev_b32 v{T0+1}, 1, v{tg}')
        a(f'v_sub_u32 v{T0+1}, v{T0+1}, v{T0+3}')
        for j in range(2):
            for qq in range(4):
                sp = 44 + 2 * (qq & 1)
                a(f'v_cmp_eq_u32 s[{sp}:{sp+1}], {8*j+qq}, v{T0+1}')
                if qq & 1:
                    a(f'v_cndmask_b32 v{SEL+8*kind+4*j+qq-1}, 0, v{T0}, s[44:45]')
                    a(f'v_cndmask_b32 v{SEL+8*kind+4*j+qq}, 0, v{T0}, s[46:47]')
    a(f'v_add_u32 v{V_L16B}, 4096, v{V_L16}')
    a('s_lshr_b32 s25, s3, 1')
    a('s_lshl_b32 s25, s25, 5')
    a(f'v_add_u32 v{T0}, s25, v{V_N}')
    a(f'v_lshlrev_b32 v{T0+1}, 6, v{V_N}')
    a(f'v_add_u32 v{T0+1}, s19, v{T0+1}')
    a(f'v_sub_u32 v{T0+1}, 2048, v{T0+1}')
    a(f'v_and_b32 v{T0+2}, 63, v{T0+1}')
    a(f'v_bfe_u32 v{T0+1}, v{T0+1}, 6, 5')
    a(f'v_cmp_ne_u32 vcc, s16, v{T0+2}')
    a(f'v_lshlrev_b32 v{T0+3}, 1, v{V_G}')
    a(f'v_cndmask_b32 v{T0+2}, 0, 32, vcc')
    a(f'v_add_u32 v{T0+1}, v{T0+1}, v{T0+2}')
    a('s_mul_i32 s24, s20, 20480')
    a(f's_add_u32 s25, s24, {L_HL}')
    a(f's_sub_u32 s24, {L_XU + 20480}, s24')
    a(f'v_bfe_u32 v{T0+2}, v{T0}, 2, 2')
    a(f'v_lshlrev_b32 v{T0+2}, 4, v{T0+2}')
    a(f'v_lshl_add_u32 v{T0+2}, v{T0}, 6, v{T0+2}')
    a(f'v_add_u32 v{T0+2}, s25, v{T0+2}')
    a(f'v_bfe_u32 v{T0+4}, v{T0+1}, 2, 2')
    a(f'v_lshlrev_b32 v{T0+4}, 4, v{T0+4}')
    a(f'v_lshl_add_u32 v{T0+4}, v{T0+1}, 6, v{T0+4}')
    a(f'v_add_u32 v{T0+4}, s24, v{T0+4}')
    a(f'v_lshlrev_b32 v{T0+5}, 4, v{V_G}')
    a(f'v_lshlrev_b32 v{T0+6}, 5, v{V_G}')
    a(f'v_xor_b32 v{V_DA}, v{T0+2}, v{T0+6}')
    a(f'v_xor_b32 v{V_DB}, 16, v{V_DA}')
    a(f'v_xor_b32 v{V_MA}, v{T0+4}, v{T0+6}')
    a(f'v_xor_b32 v{V_MA}, 32, v{V_MA}')
    a(f'v_xor_b32 v{V_MB}, 16, v{V_MA}')
    a(f'v_xor_b32 v{V_RD}, v{T0+2}, v{T0+5}')
    a(f'v_xor_b32 v{V_RD+1}, 32, v{V_RD}')
    a(f'v_xor_b32 v{V_RM}, v{T0+4}, v{T0+5}')
    a(f'v_xor_b32 v{V_RM+1}, 32, v{V_RM}')
    a(f'v_add_u32 v{V_EX}, 4096, v{T0+4}')
    a('s_cmp_eq_u32 s20, 0')
    a('s_cselect_b32 s24, 40960, 0')
    a(f'v_subrev_u32 v{V_EX0}, s24, v{V_EX}')
    a(f'v_or_b32 v{T0+5}, s20, v{V_G}')
    a(f'v_cmp_eq_u32 vcc, 0, v{T0+5}')
    a(f'v_cvt_f32_u32 v{V_GM}, v{V_G}')
    a(f'v_sub_f32 v{V_GM}, 1.0, v{V_GM}')
    a(f'v_cndmask_b32 v{V_MASK}, 0, -1.0, vcc')
    a(f'v_bfe_u32 v{T0+2}, v{V_N}, 2, 2')
    a(f'v_xor_b32 v{T0+2}, v{T0+2}, v{V_G}')
    a(f'v_lshlrev_b32 v{T0+2}, 4, v{T0+2}')
    a(f'v_lshl_add_u32 v{T0+2}, v{V_N}, 6, v{T0+2}')
    a(f'v_add_u32 v{V_HB}, {L_HL}, v{T0+2}')
    a(f'v_xor_b32 v{V_HB+1}, 32, v{V_HB}')
    a(f'v_add_u32 v{V_HB+2}, {L_HU}, v{T0+2}')
    a(f'v_xor_b32 v{V_HB+3}, 32, v{V_HB+2}')
    for xb in XB: a(f'v_mov_b32 v{xb+16}, 0')
    for r in range(4): a(f'v_mov_b32 v{V_SD+r}, 0')
    a(f'v_mov_b32 v{V_ONE}, 0x3f803f80')
    a('s_lshl_b32 s24, s20, 4')
    a(f's_add_u32 s24, s24, {L_SP}')
    a(f'v_lshl_add_u32 v{T0+5}, v{V_G}, 3, s24')
    a(f'v_lshl_add_u32 v{V_STD}, v{T0}, 6, v{T0+5}')
    a(f'v_lshl_add_u32 v{V_STM}, v{T0+1}, 6, v{T0+5}')
    a('s_mul_i32 s24, s16, 56')
    a('s_add_u32 s25, s24, s26')
    a('s_lshl_b32 s40, s25, 12')
    a('s_add_u32 s41, s40, 16384')
    a('s_mul_i32 s25, s3, 14')
    a('s_add_u32 s24, s24, s25')
    a('s_lshl_b32 s76, s24, 12')
    a('s_lshl_b32 s24, s16, 3')
    a('s_add_u32 s25, s24, s17')
    a('s_lshl_b32 s25, s25, 7')
    a('s_lshl_b32 s42, s3, 2')
    a('s_add_u32 s42, s42, s25')
    a('s_lshl_b32 s25, s3, 1')
    a('s_add_u32 s24, s24, s25')
    a('s_lshl_b32 s43, s24, 7')
    a('s_mul_i32 s74, s3, 573440')
    a('s_mul_i32 s24, s17, 5120')
    a('s_add_u32 s74, s74, s24')
    a('s_mul_i32 s27, s17, 160')
    a('s_add_u32 s78, s27, s21')
    a.lead = opt.k2_lead0

    def xreads(i):
        xb = XB[i & 1]
        if XG[i]:
            a.wait(vm=f'x{i}'); a('s_barrier')
        a(f'ds_read_b128 v[{xb}:{xb+3}], v{V_RD} offset:{i*4096}', tag=f'xd{i}')
        a(f'ds_read_b128 v[{xb+4}:{xb+7}], v{V_RD+1} offset:{i*4096}', tag=f'xd{i}')
        a(f'ds_read_b128 v[{xb+8}:{xb+11}], v{V_RM} offset:{(4-i)*4096}', tag=f'xm{i}')
        a(f'ds_read_b128 v[{xb+12}:{xb+15}], v{V_RM+1} offset:{(4-i)*4096}', tag=f'xm{i}')
        a(f'ds_read_u16_d16_hi v{xb+16}, v{V_EX0 if i == 0 else V_EX} offset:{(4-i)*4096}', tag=f'xm{i}')
    fill = []
    def post(i):
        dy, dd, xb = DY[i & 1], DD[i & 1], XB[i & 1]
        PK = ZR + 16 * i
        if i == 0: fill.append(lambda: a(f'v_fmac_f32 v{dd}, v{V_MASK}, v{dy}'))
        fill.append(lambda: a(f'v_fmac_f32 v{dy}, v{V_GM}, v{xb+16}'))
        for part in range(4):
            for q4 in range(4):
                qq = (part & 1) * 4 + q4
                dst = PK + part * 4 + q4
                if part < 2: fill.append(lambda qq=qq, dst=dst: a(f'v_cvt_pk_bf16_f32 v{dst}, v{dd+2*qq}, v{dd+2*qq+1}'))
                else: fill.append(lambda qq=qq, dst=dst: a(f'v_cvt_pk_bf16_f32 v{dst}, v{dy+15-2*qq}, v{dy+14-2*qq}'))
            ad = (V_DA, V_DB, V_MA, V_MB)[part]
            off = i * 4096 if part < 2 else 40960 + (4 - i) * 4096
            p0 = PK + part * 4
            fill.append(lambda ad=ad, off=off, p0=p0: a(f'ds_write_b128 v{ad}, v[{p0}:{p0+3}] offset:{off}', tag='hw'))
    def dots(i):
        PK = ZR + 16 * i
        for qq in range(8):
            a(f'v_dot2c_f32_bf16 v{V_SD}, v{PK+qq}, v{V_ONE}')
            a(f'v_dot2c_f32_bf16 v{V_SD+1}, v{PK+qq}, v{PK+qq}')
            a(f'v_dot2c_f32_bf16 v{V_SM}, v{PK+8+qq}, v{V_ONE}')
            a(f'v_dot2c_f32_bf16 v{V_SM+1}, v{PK+8+qq}, v{PK+8+qq}')
    M = 'v_mfma_f32_32x32x16_bf16'
    for i in range(5):
        dy, dd, xb = DY[i & 1], DD[i & 1], XB[i & 1]
        a.wait(vm=f'z{i}')
        if i == 0: stamp(a, 2, 1)
        for kk in range(4):
            cin = '0' if kk == 0 else f'v[{dy}:{dy+15}]'
            a(f'{M} v[{dy}:{dy+15}], v[{ZR+16*i+4*kk}:{ZR+16*i+4*kk+3}], v[{W2C+4*kk}:{W2C+4*kk+3}], {cin}')
            if kk == 0: xreads(i)
            else:
                for _ in range(4):
                    if fill: fill.pop(0)()
        a.wait(lg=f'xd{i}')
        a(f'{M} v[{dd}:{dd+15}], v[{SEL}:{SEL+3}], v[{xb}:{xb+3}], v[{dy}:{dy+15}]')
        for _ in range(4):
            if fill: fill.pop(0)()
        a.wait(lg=f'xm{i}')
        a(f'{M} v[{dy}:{dy+15}], v[{SEL+8}:{SEL+11}], v[{xb+8}:{xb+11}], v[{dy}:{dy+15}]')
        for _ in range(3):
            if fill: fill.pop(0)()
        a(f'{M} v[{dd}:{dd+15}], v[{SEL+4}:{SEL+7}], v[{xb+4}:{xb+7}], v[{dd}:{dd+15}]')
        for _ in range(3):
            if fill: fill.pop(0)()
        a(f'{M} v[{dy}:{dy+15}], v[{SEL+12}:{SEL+15}], v[{xb+12}:{xb+15}], v[{dy}:{dy+15}]')
        while fill: fill.pop(0)()
        if i: dots(i - 1)
        post(i)
    while fill: fill.pop(0)()
    dots(4)
    a(f'ds_write_b64 v{V_STD}, v[{V_SD}:{V_SD+1}]', tag='hw')
    a(f'ds_write_b64 v{V_STM}, v[{V_SM}:{V_SM+1}] offset:32', tag='hw')
    a.wait(lg='all')
    a.pumping = False
    a('s_barrier')
    stamp(a, 3, 1)
    a('s_cmp_eq_u32 s3, 3')
    a('s_cbranch_scc1 L2_w3')
    snap = a.snapshot(); q_left = list(a.q); st_snap = dict(st8)
    pool_snap = (list(pool.free), dict(pool.where))
    ctx = dict(locals())
    rest(a, True, ctx)
    a.label('L2_end')
    a('s_endpgm')
    a.label('L2_w3')
    a.restore(snap); a.q = list(q_left); st8.update(st_snap)
    pool.free, pool.where = list(pool_snap[0]), dict(pool_snap[1])
    rest(a, False, ctx)
    a('s_endpgm')

def rest(a, two, c):
    opt = gen.opt
    pool, st8, w1load = c['pool'], c['st8'], c['w1load']
    V_G, V_N, V_L16, V_L16B, V_HB, HB, ACC1 = (c[k] for k in ('V_G', 'V_N', 'V_L16', 'V_L16B', 'V_HB', 'HB', 'ACC1'))
    sfx = 'a' if two else 'b'
    M = 'v_mfma_f32_32x32x16_bf16'
    V_ST = 9; V_ROFF = 10; V_POLL = 11; V_PD = 12; V_FL = 13; V_ZERO = 14; V_G4 = 15; V_T = 16; V_RS2 = 17
    V_R = 18
    V_TW = 22; V_TR = 23; V_OO = 26; E = 30
    RES = 32
    OWN = 52
    TMP = 72
    pool.add(112, 160)
    NE = 8
    korder = [0, 1, 2, 3, 7, 8, 9, 10, 4, 5, 6, 11, 12, 13]
    def w2load(i, T):
        if st8['w2'] != i:
            a(f's_add_u32 s75, s74, {korder[i]*40960}'); st8['w2'] = i
        v, off = (V_L16, T * 1024) if T < 4 else (V_L16B, 0)
        r = pool.take(('w2', i, T))
        a(f'buffer_load_dwordx4 {ur(r, 4)}, v{v}, s[60:63], s75 offen offset:{off}', tag=f'w2_{i}_{T}')
    def rload(i, sig):
        if st8['r'] != i:
            a(f's_add_u32 s77, s76, {korder[i]*4096}'); st8['r'] = i
        r = pool.take(('r', i, sig))
        a(f'buffer_load_dwordx4 {ur(r, 4)}, v{V_R+sig}, s[64:67], s77 offen sc1', tag=f'r_{i}_{sig}')
    W2 = lambda i: [(tagged(lambda T=T: w2load(i, T), f'w2_{i}_{T}'), pool.ok, 1) for T in range(5)]
    gate = {'E': False, 'L': False}
    RL = lambda i, sigs=range(4): [(tagged(lambda s=s: rload(i, s), f'r_{i}_{s}'), (lambda: pool.ok() and gate['E' if i < NE else 'L']), 1) for s in sigs]
    if two:
        a.q += [(tagged(lambda ks=ks: w1load(1, ks, pool), f'w1_1_{ks}'), pool.ok, 1) for ks in range(41)]
    npre = opt.k2_npre_a if two else opt.k2_npre_b
    for i in range(npre): a.q += W2(i)
    NL = opt.k2_nlast
    nxt = npre
    for i in range(14 - NL):
        a.q += RL(i)
        if nxt < 14:
            a.q += W2(nxt); nxt += 1
    while nxt < 14: a.q += W2(nxt); nxt += 1
    for s in range(4):
        for i in range(14 - NL, 14): a.q += RL(i, [s])
    a.pumping = True
    a.lead = opt.k2_lead
    a.interval = opt.k2_int1 if two else opt.k2_int1b

    fill = []
    def F(txt, tag=None): fill.append(lambda: a(txt, tag=tag))
    def W(**kw): fill.append(lambda: a.wait(**kw))
    def SKIP(n):
        for _ in range(n): fill.append(lambda: None)
    def run(n=None):
        k = len(fill) if n is None else min(n, len(fill))
        for _ in range(k): fill.pop(0)()
    def setup1():
        F(f'v_lshlrev_b32 v{V_ST}, 4, v{V_N}')
        F(f'v_add_u32 v{V_ST}, {L_ST}, v{V_ST}')
        F(f'v_lshrrev_b32 v{E}, 4, v{V_N}')
        F(f'v_lshlrev_b32 v{E}, 10, v{E}')
        F(f'v_lshl_add_u32 v{E}, v{V_G}, 9, v{E}')
        F(f'v_and_b32 v{V_T}, 15, v0')
        F(f'v_lshl_add_u32 v{V_ROFF}, v{V_T}, 4, v{E}')
        F(f'v_lshrrev_b32 v{V_G4}, 4, v0')
        F(f'v_mov_b32 v{V_FL}, 1')
        F(f'v_mov_b32 v{V_ZERO}, 0')
        F(f'v_bfe_u32 v{E}, v0, 3, 1')
        F(f'v_and_b32 v{E+1}, 7, v0')
        F(f'v_lshlrev_b32 v{E+1}, 2, v{E+1}')
        F(f'v_lshl_add_u32 v{V_POLL}, v{E}, 7, v{E+1}')
        for sig in range(4):
            F(f's_add_u32 s24, s3, {1+sig}\ns_and_b32 s24, s24, 3\ns_lshl_b32 s25, s24, 10\nv_add_u32 v{V_R+sig}, s25, v{V_L16}')
        F(f'v_lshlrev_b32 v{E}, 3, v{V_G4}')
        for T in range(5):
            F(f'buffer_load_dwordx2 v[{TMP+30+2*T}:{TMP+31+2*T}], v{E}, s[56:59], s27 offen offset:{32*T}', 'b2')
    def resid():
        X = TMP
        F(f's_lshl_b32 s24, s3, 4\nv_add_u32 v{X}, s24, v{V_T}')
        F(f'v_lshlrev_b32 v{V_RS2}, 2, v{X}')
        F(f'v_bfe_u32 v{X+1}, v{X}, 2, 2')
        F(f's_mov_b32 s24, {L_HL}\ns_cmp_ge_u32 s17, 4\ns_cselect_b64 s[44:45], -1, 0\ns_cselect_b32 s24, {L_HU - 40960}, s24\nv_lshl_add_u32 v{X}, v{X}, 6, s24')
        F(f's_mul_i32 s24, s17, 80\nv_lshl_add_u32 v{X+2}, v{V_G4}, 2, s24')
        F(f'v_add_u32 v{V_RS2}, {L_ST + 1024}, v{V_RS2}')
        F(f'ds_read_b32 v{V_RS2}, v{V_RS2}', 'rs2')
        def haddr(dst, kap):
            F(f'v_bfe_u32 v{X+3}, v{kap}, 3, 2')
            F(f'v_lshrrev_b32 v{X+4}, 5, v{kap}')
            F(f'v_xor_b32 v{X+3}, v{X+3}, v{X+1}')
            F(f'v_lshl_add_u32 v{X+3}, v{X+3}, 4, v{X}')
            F(f'v_lshl_add_u32 v{X+3}, v{X+4}, 12, v{X+3}')
            F(f'v_and_b32 v{X+4}, 7, v{kap}')
            F(f'v_lshl_add_u32 v{dst}, v{X+4}, 1, v{X+3}')
        A = X + 6
        haddr(A, X + 2)
        F(f'v_add_u32 v{X+5}, 16, v{X+2}'); haddr(A + 1, X + 5)
        F(f'v_add_u32 v{X+5}, 31, v{X+2}'); haddr(A + 2, X + 5)
        F(f'v_add_u32 v{X+5}, 15, v{X+2}'); haddr(A + 3, X + 5)
        F(f'v_cmp_eq_u32 vcc, 320, v{X+2}')
        F(f'v_max_u32 v{X+5}, 1, v{X+2}')
        F(f'v_subrev_u32 v{X+5}, 1, v{X+5}')
        F(f'v_mov_b32 v{X+4}, 639')
        F(f'v_cndmask_b32 v{X+5}, v{X+5}, v{X+4}, vcc')
        haddr(A + 4, X + 5)
        Y = X + 12
        for T in range(5):
            F(f'ds_read_b64 v[{Y+2*T}:{Y+2*T+1}], v{A+(T&1)} offset:{(T>>1)*4096}', 'ini')
            if T == 0: F(f'ds_read_u16 v{Y+10}, v{A+4}', 'ini')
            else: F(f'ds_read_u16 v{Y+10+T}, v{A+2+(T&1)} offset:{((T-1)>>1)*4096}', 'ini')
        SKIP(4)
        W(lg='ini', vm='b2')
        for T in range(5):
            g0, g1, pv, b = Y + 2 * T, Y + 2 * T + 1, Y + 10 + T, TMP + 30 + 2 * T
            ac = RES + 4 * T
            F(f'v_lshl_or_b32 v{pv}, v{g0}, 16, v{pv}')
            F(f'v_alignbit_b32 v{X+3}, v{g1}, v{g0}, 16')
            F(f'v_cndmask_b32 v{g0}, v{g0}, v{pv}, s[44:45]')
            F(f'v_cndmask_b32 v{g1}, v{g1}, v{X+3}, s[44:45]')
            for i in range(4):
                if i & 1:
                    F(f'v_and_b32 v{ac+i}, 0xffff0000, v{g0+(i>>1)}')
                    F(f'v_and_b32 v{X+4}, 0xffff0000, v{b+(i>>1)}')
                else:
                    F(f'v_lshlrev_b32 v{ac+i}, 16, v{g0+(i>>1)}')
                    F(f'v_lshlrev_b32 v{X+4}, 16, v{b+(i>>1)}')
                F(f'v_add_f32 v{ac+i}, v{ac+i}, v{X+4}')
    def outaddr():
        X = TMP
        F(f's_mul_i32 s24, s3, 2816\ns_add_u32 s24, s24, {L_TR}\nv_mul_u32_u24 v{V_TW}, 176, v{V_T}')
        F(f'v_lshl_add_u32 v{V_TW}, v{V_G4}, 3, v{V_TW}')
        F(f'v_add_u32 v{V_TW}, s24, v{V_TW}')
        F('s_mov_b32 s25, 81920')
        for k in range(3):
            F(f'v_add_u32 v{X}, {64*k}, v0')
            F(f'v_mul_u32_u24 v{X+1}, 6554, v{X}')
            F(f'v_lshrrev_b32 v{X+1}, 16, v{X+1}')
            F(f'v_mul_u32_u24 v{X+2}, 10, v{X+1}')
            F(f'v_sub_u32 v{X}, v{X}, v{X+2}')
            F(f'v_lshlrev_b32 v{X}, 4, v{X}')
            F(f'v_mad_u32_u24 v{V_OO+k}, v{X+1}, s25, v{X}')
            if k == 2:
                F(f'v_cmp_lt_u32 vcc, 15, v{X+1}')
                F(f'v_mov_b32 v{X+2}, 0x40000000')
                F(f'v_min_u32 v{X+1}, 15, v{X+1}')
                F(f'v_cndmask_b32 v{V_OO+k}, v{V_OO+k}, v{X+2}, vcc')
            F(f'v_mul_u32_u24 v{X+1}, 176, v{X+1}')
            F(f'v_add3_u32 v{V_TR+k}, v{X+1}, v{X}, s24')
        fill.append(lambda: pool.add(TMP, 112))
    def epi(u, packed):
        X = TMP + 26
        for tt in range(2):
            ac = ACC1 + u * 32 + tt * 16
            for r0 in range(0, 16, 4):
                if packed:
                    for r in range(r0, r0 + 4): F(f'v_max_f32 v{ac+r}, 0, v{ac+r}')
                    for r in (r0, r0 + 2): F(f'v_pk_mul_f32 v[{ac+r}:{ac+r+1}], v[{ac+r}:{ac+r+1}], v[{ac+r}:{ac+r+1}]')
                else:
                    for r in range(r0, r0 + 4): F(f'v_max_f32 v{ac+r}, 0, v{ac+r}')
                    for r in range(r0, r0 + 4): F(f'v_mul_f32 v{ac+r}, v{ac+r}, v{ac+r}')
                for q in (r0 // 2, r0 // 2 + 1): F(f'v_cvt_pk_bf16_f32 v{ac+q}, v{ac+2*q}, v{ac+2*q+1}')
                if r0 in (4, 12):
                    ab = r0 // 8
                    F(f'buffer_store_dwordx4 v[{ac+4*ab}:{ac+4*ab+3}], v{V_ROFF}, s[64:67], s{40+u} offen offset:{tt*2048 + ab*256} sc1', f'rst{u}')
    def flag(u):
        a.wait(vm=f'rst{u}')
        a(f'buffer_store_dword v{V_FL}, v{V_ZERO}, s[68:71], s42 offen offset:{16*u} sc1', tag='flag')
    def poll_issue(k):
        a(f'buffer_load_dword v{V_PD}, v{V_POLL}, s[68:71], s43 offen sc1', tag=f'poll{k}')
    def poll_check(k):
        mask = 0x0f0f if k == 'E' else 0x7070
        p = a.pumping; a.pumping = False
        a.wait(vm=f'poll{k}')
        a('s_mov_b32 s46, 0')
        a.label(f'L2_pc{k}{sfx}')
        a(f'v_cmp_eq_u32 vcc, 1, v{V_PD}')
        a(f's_and_b32 s47, vcc_lo, {hex(mask)}')
        a(f's_cmp_eq_u32 s47, {hex(mask)}')
        a(f's_cbranch_scc1 L2_pg{k}{sfx}')
        a('s_add_u32 s46, s46, 1')
        a('s_cmp_ge_u32 s46, 0x40000')
        a(f's_cbranch_scc1 L2_pg{k}{sfx}')
        a(f's_sleep {opt.k2_sleep}')
        a.raw(f'    buffer_load_dword v{V_PD}, v{V_POLL}, s[68:71], s43 offen sc1')
        a.raw('    s_waitcnt vmcnt(0)')
        a(f's_branch L2_pc{k}{sfx}')
        a.label(f'L2_pg{k}{sfx}')
        gate[k] = True
        a.pumping = p

    PF = 6
    steps = [(u, ks, tt) for u in range(2 if two else 1) for ks in range(41) for tt in range(2)]
    bar_at = opt.k2_bar
    def hread(n):
        u, ks, tt = steps[n]
        r = HB + (n & 7) * 4
        if ks == 40:
            a(f'ds_read_b128 v[{r}:{r+3}], v{V_ST} offset:{tt * 512}', tag=f'h{n}')
            return
        Q = ks >> 1
        ad = V_HB + (2 if Q >= 10 else 0) + (ks & 1)
        a(f'ds_read_b128 v[{r}:{r+3}], v{ad} offset:{(Q % 10) * 4096 + tt * 2048}', tag=f'h{n}')
    for n in range(PF): hread(n)
    setup1()
    SA = TMP
    def stats_finish():
        a(f'v_lshlrev_b32 v{SA+16}, 6, v0')
        a(f'v_add_u32 v{SA+16}, {L_SP}, v{SA+16}')
        for q in range(4): a(f'ds_read_b128 v[{SA+4*q}:{SA+4*q+3}], v{SA+16} offset:{16*q}', tag='sp')
        a.wait(lg='sp')
        for st in (8, 4, 2):
            for k in range(0, st, 2): a(f'v_pk_add_f32 v[{SA+k}:{SA+k+1}], v[{SA+k}:{SA+k+1}], v[{SA+k+st}:{SA+k+st+1}]')
        a(f'v_mul_f32 v{SA}, {f32(-1/640)}, v{SA}')
        a(f'v_mul_f32 v{SA+1}, {f32(1/640)}, v{SA+1}')
        a(f'v_fma_f32 v{SA+1}, -v{SA}, v{SA}, v{SA+1}')
        a(f'v_max_f32 v{SA+1}, 0, v{SA+1}')
        a(f'v_add_f32 v{SA+1}, {f32(1e-5)}, v{SA+1}')
        a(f'v_sqrt_f32 v{SA+2}, v{SA+1}')
        a(f'v_rcp_f32 v{SA+3}, v{SA+1}')
        O = SA + 8
        a(f'v_cvt_pk_bf16_f32 v{O+1}, v{SA}, v{SA+2}')
        a(f'v_lshlrev_b32 v{SA+5}, 16, v{O+1}')
        a(f'v_and_b32 v{SA+6}, 0xffff0000, v{O+1}')
        a(f'v_sub_f32 v{SA+5}, v{SA}, v{SA+5}')
        a(f'v_sub_f32 v{SA+6}, v{SA+2}, v{SA+6}')
        a(f'v_cvt_pk_bf16_f32 v{O}, v{SA}, v{SA+5}')
        a(f'v_mov_b32 v{O+3}, 0')
        a(f'v_cvt_pk_bf16_f32 v{O+2}, v{SA+6}, v{O+3}')
        a(f'v_add_u32 v{SA+5}, {L_ST}, v{V_L16}')
        a(f'v_lshlrev_b32 v{SA+6}, 2, v0')
        a(f'v_add_u32 v{SA+6}, {L_ST + 1024}, v{SA+6}')
        a(f'ds_write_b128 v{SA+5}, v[{O}:{O+3}]', tag='stw')
        a(f'ds_write_b32 v{SA+6}, v{SA+3}', tag='stw')
    ev = {}
    if two:
        ev[84] = lambda: epi(0, False)
        ev[opt.k2_flag0] = lambda: flag(0)
        ev[opt.k2_pollE] = lambda: poll_issue('E')
    else:
        stats_finish()
    for n, (u, ks, tt) in enumerate(steps):
        if n == 80: stamp(a, 4, 1)
        if n in ev: ev[n]()
        if n == (bar_at if two else bar_at - 10):
            a.wait(lg='stw'); a('s_barrier')
        if n + PF < len(steps): hread(n + PF)
        hb = HB + (n & 7) * 4
        a.wait(vm=f'w1_{u}_{ks}', lg=f'h{n}')
        ac = ACC1 + u * 32 + tt * 16
        cin = '0' if ks == 0 else f'v[{ac}:{ac+15}]'
        a(f'{M} v[{ac}:{ac+15}], {ur(pool.where[("w1", u, ks)], 4)}, v[{hb}:{hb+3}], {cin}')
        if tt == 1: pool.give(('w1', u, ks))
        run(opt.k2_fill)
    print(f'path {sfx}: fillers left after GEMM1: {len(fill)}, queue {len(a.q)}, t = {a.t:.0f}')
    run()
    stamp(a, 5, 1)
    pool.add(HB, HB + 32)
    a.interval = opt.k2_int2
    lu = 1 if two else 0
    epi(lu, True); run()
    if two:
        poll_check('E')
        resid(); outaddr()
        run(opt.k2_pre2)
        flag(lu)
    else:
        a.interval = opt.k2_int1b
        resid(); outaddr()
        run(opt.k2_pre2)
        flag(lu)
        run()
        while a.q and a.q[0][1]():
            a.pump(force=1); a(f's_nop {opt.k2_w3nop}')
        a.interval = opt.k2_int2
        poll_issue('E'); poll_check('E')
    stamp(a, 6, 1)
    def acc2(sig, T):
        if sig == 3: return OWN + 4 * T
        return ACC1 + 4 * (sig * 5 + T)
    g2 = [(i, s) for i in range(14 - NL) for s in range(4)] + [(i, s) for s in range(4) for i in range(14 - NL, 14)]
    ev = {}
    ev[opt.k2_pollL] = lambda: poll_issue('L')
    ev[opt.k2_chkL] = lambda: poll_check('L')
    first_last = 4 * (14 - NL)
    for n, (i, sig) in enumerate(g2):
        if n in ev: ev[n]()
        if n >= first_last + NL and (n - first_last) % NL == 0:
            s_done = (n - first_last) // NL - 1
            SKIP(2)
            for T in range(5):
                F(f'ds_write_b128 v{V_R+s_done}, {ur(acc2(s_done, T), 4)} offset:{L_RED + s_done*20480 + T*4096}', 'rw')
                SKIP(1)
        a.wait(vm=[f'r_{i}_{sig}'] + [f'w2_{i}_{T}' for T in range(5)])
        if n == 0: stamp(a, 7, 1)
        rr = pool.where[('r', i, sig)]
        for T in range(5):
            ac = acc2(sig, T)
            cin = '0' if i == 0 else ur(ac, 4)
            a(f'v_mfma_f32_16x16x32_bf16 {ur(ac, 4)}, {ur(pool.where[("w2", i, T)], 4)}, {ur(rr, 4)}, {cin}')
            if sig == 3: pool.give(('w2', i, T))
            run(1)
        pool.give(('r', i, sig))
    assert not a.q
    a.pumping = False
    run()
    stamp(a, 9, 1)
    a.wait(lg='all')
    a('s_barrier')
    R0 = ACC1
    for T in range(5):
        for s in range(3):
            r = R0 + T * 12 + s * 4
            a(f'ds_read_b128 v[{r}:{r+3}], v{V_R+3} offset:{L_RED + s*20480 + T*4096}', tag=f'rd{T}')
    for T in range(5):
        a.wait(lg=f'rd{T}')
        ac = OWN + 4 * T; r = R0 + T * 12; rs = RES + 4 * T
        for i in (0, 2): a(f'v_pk_add_f32 v[{r+i}:{r+i+1}], v[{r+i}:{r+i+1}], v[{r+4+i}:{r+5+i}]')
        for i in (0, 2): a(f'v_pk_add_f32 v[{ac+i}:{ac+i+1}], v[{ac+i}:{ac+i+1}], v[{r+8+i}:{r+9+i}]')
        for i in (0, 2): a(f'v_pk_add_f32 v[{ac+i}:{ac+i+1}], v[{ac+i}:{ac+i+1}], v[{r+i}:{r+i+1}]')
        for i in (0, 2): a(f'v_pk_fma_f32 v[{ac+i}:{ac+i+1}], v[{ac+i}:{ac+i+1}], v[{V_RS2-1}:{V_RS2}], v[{rs+i}:{rs+i+1}] op_sel:[0,1,0] op_sel_hi:[1,1,1]')
        a(f'v_cvt_pk_bf16_f32 v{ac}, v{ac}, v{ac+1}')
        a(f'v_cvt_pk_bf16_f32 v{ac+1}, v{ac+2}, v{ac+3}')
        a(f'ds_write_b64 v{V_TW}, v[{ac}:{ac+1}] offset:{T*32}', tag='tw')
    a.wait(lg='all')
    for k in range(3):
        a(f'ds_read_b128 v[{R0+4*k}:{R0+4*k+3}], v{V_TR+k}', tag=f'tr{k}')
    for k in range(3):
        a.wait(lg=f'tr{k}')
        a(f'buffer_store_dwordx4 v[{R0+4*k}:{R0+4*k+3}], v{V_OO+k}, s[8:11], s78 offen')
    print(f'path {sfx}: est total t = {a.t:.0f}, forced = {getattr(a, "forced", 0)}')
    if opt.stamps:
        stamp(a, 8, 1); a.wait(vm='all'); stamp(a, 10, 1); stamp_flush(a, 11, 1, 6, 3, sfx)
```

```python
import sys, struct
from asmlib import *

NAME = 'sequential_preLN__spectral_fnet__dense_activation_squared_relu__prompt'
S, D, F = 2048, 640, 1728
Z_OFF, Z_SZ = 0x0, 64 * 32 * 1280
W1F_OFF, W1F_SZ = 0x280000, 54 * 41 * 1024
W2F_OFF, W2F_SZ = 0x4B0000, 54 * 40 * 1024
R_OFF, R_SZ = 0x700000, 32 * 56 * 4096
FLAG_OFF, FLAG_SZ = 0xE00000, 256 * 128
TS_OFF = 0x1000000

def f32(x): return '0x%08x' % struct.unpack('<I', struct.pack('<f', x))[0]

class Opt:
    stamps = False
    dbgstamps = 0
    mimic1 = True
    x_nt = False
    w_nt = True
    wf_store = 'sc1'
    z_store = ''
    k1_pre = 2
    k1_int = 56
    k1_first = 10
    map2 = False
    abl = ''
    cyc = False
    verbose = False
    xaff = False
    k2_int = 64
    k2_int1 = 70
    k2_int1b = 90
    k2_int2 = 60
    k2_lead = 14
    k2_lead0 = 11
    k2_fill = 3
    k2_npre_a = 4
    k2_npre_b = 12
    k2_nlast = 3
    k2_bar = 24
    k2_sleep = 4
    k2_w3nop = 15
    k2_flag0 = 134
    k2_pollE = 160
    k2_pre2 = 120
    k2_pollL = 12
    k2_chkL = 20
opt = Opt()

def srd(a, d, base, off, size):
    if off:
        a(f's_add_u32 s{d}, s{base}, {hex(off)}')
        a(f's_addc_u32 s{d+1}, s{base+1}, 0')
    else:
        a(f's_mov_b32 s{d}, s{base}')
        a(f's_mov_b32 s{d+1}, s{base+1}')
    a(f's_mov_b32 s{d+2}, {hex(size)}')
    a(f's_mov_b32 s{d+3}, 0x20000')

def perm32(a, r, t):
    a(f's_lshr_b32 s{t}, s{r}, 1')
    a(f's_sub_u32 s{t+1}, 32, s{t}')
    a(f's_cmp_eq_u32 s{r}, 1')
    a(f's_cselect_b32 s{t+1}, 16, s{t+1}')
    a(f's_and_b32 s{r}, s{r}, 1')
    a(f's_cselect_b32 s{r}, s{t+1}, s{t}')

def stamp(a, idx, kern):
    if kern == 1 and opt.verbose: print(f'  stamp {idx}: items issued {len(a.items)} model t {a.t:.0f}')
    if opt.stamps:
        a(f'{"s_memtime" if opt.cyc else "s_memrealtime"} s[{80+2*idx}:{81+2*idx}]')

def stamp_flush(a, n, kern, wsreg, wave_s, sfx=''):
    if not opt.stamps: return
    a.wait(lg='all')
    if opt.dbgstamps and n > 2:
        lab = f'L_dbg{kern}{sfx}'
        a(f's_cmp_lg_u32 s2, {opt.dbgstamps}')
        a(f's_cbranch_scc1 {lab}')
        a(f's_cmp_lg_u32 s{wave_s}, 0')
        a(f's_cbranch_scc1 {lab}')
        a('s_load_dwordx2 s[74:75], s[0:1], 88')
        a.wait(lg='all')
        a(f's_add_u32 s76, s74, {512*(1-kern)}')
        a('s_addc_u32 s77, s75, 0')
        a('s_mov_b32 s78, 64')
        a('s_mov_b32 s79, 0x20000')
        a('v_mov_b32 v0, 0')
        sel = list(range(6)) if kern == 0 else [0, 1, 2, 3, 4, 5, 6, 8, 9, 10]
        for j, i in enumerate(sel):
            a(f'v_mov_b32 v1, s{80+2*i}')
            a(f'buffer_store_dword v1, v0, s[76:79], 0 offen offset:{4*(j + 6*kern)}')
            a('s_nop 1')
        a.label(lab)
    srd(a, 76, wsreg, TS_OFF + kern * 0x10000, 0x10000)
    a('s_lshl_b32 s75, s2, 8')
    a(f's_lshl_b32 s74, s{wave_s}, 6')
    a('s_add_u32 s75, s75, s74')
    a('v_mov_b32 v0, 0')
    for i in range(n):
        a(f'v_mov_b32 v1, s{80+2*i}')
        a(f'buffer_store_dword v1, v0, s[76:79], s75 offen offset:{4*i}')
        a('s_nop 1')

K1_LDS = 81920 + 1024

def k1(a):
    a.label('k1_kernel')
    stamp(a, 0, 0)
    a('s_cmp_ge_u32 s2, 256')
    a('s_cbranch_scc1 L1_end')
    a('s_load_dwordx2 s[4:5], s[0:1], 0')
    a('s_load_dwordx2 s[6:7], s[0:1], 96')
    a('s_load_dwordx4 s[8:11], s[0:1], 48')
    a('s_load_dwordx2 s[40:41], s[0:1], 64')
    a('v_lshrrev_b32 v1, 6, v0')
    a('v_and_b32 v0, 63, v0')
    a('v_readfirstlane_b32 s3, v1')
    a('s_and_b32 s12, s2, 7')
    a('s_lshr_b32 s13, s2, 3')
    a('s_cmp_eq_u32 s13, 0')
    a('s_cbranch_scc1 L1_misc')
    a('s_cmp_ge_u32 s13, 21')
    a('s_cbranch_scc1 L1_relayout')
    k1_fft(a)
    a.label('L1_end')
    a('s_endpgm')
    a.newpath(); a.smem = True
    a.label('L1_misc')
    k1_misc(a)
    a('s_endpgm')
    a.newpath(); a.smem = True
    a.label('L1_relayout')
    a('s_sub_u32 s13, s13, 21')
    a('s_lshl_b32 s13, s13, 3')
    a('s_add_u32 s13, s13, s12')
    a('s_cmp_ge_u32 s13, 54')
    a('s_cbranch_scc1 L1_w2')
    k1_w1(a)
    a('s_endpgm')
    a.newpath(); a.smem = True
    a.label('L1_w2')
    k1_w2(a)
    a('s_endpgm')

def k1_misc(a):
    a('s_getpc_b64 s[14:15]')
    a.label('L1_pc')
    a('s_sub_u32 s14, s14, L1_pc-k1_kernel')
    a('s_subb_u32 s15, s15, 0')
    a('s_mov_b32 s16, s14')
    a('s_mov_b32 s17, s15')
    a('s_mov_b32 s18, L_code_end-k1_kernel')
    a('s_mov_b32 s19, 0x20000')
    a('s_lshl_b32 s20, s3, 10')
    a('v_lshlrev_b32 v1, 4, v0')
    a('v_add_u32 v1, s20, v1')
    for i in range(10):
        a(f's_mov_b32 s21, {i*4096}')
        a(f'buffer_load_dwordx4 v[{4+4*i}:{7+4*i}], v1, s[16:19], s21 offen')
    a.wait(lg='all')
    srd(a, 24, 6, FLAG_OFF, FLAG_SZ)
    a('s_lshl_b32 s21, s12, 12')
    for i in range(4): a(f'v_mov_b32 v{60+i}, 0')
    a('buffer_store_dwordx4 v[60:63], v1, s[24:27], s21 offen')
    a.wait(vm='all')
    stamp(a, 1, 0)
    stamp_flush(a, 2, 0, 6, 3)

def k1_w1(a):
    nt = ' nt' if opt.w_nt else ''
    a('s_lshr_b32 s14, s13, 1')
    a('s_and_b32 s15, s13, 1')
    a('s_mul_i32 s16, s15, 320')
    a('s_mul_i32 s17, s3, 80')
    a('s_add_u32 s16, s16, s17')
    a('s_add_u32 s17, s16, s15')
    a('v_lshrrev_b32 v1, 3, v0')
    a('v_add_u32 v2, s17, v1')
    a('v_add_u32 v3, 72, v2')
    a('v_mov_b32 v4, 320')
    a('v_cmp_eq_u32 vcc, 640, v3')
    a('v_cndmask_b32 v3, v3, v4, vcc')
    a('v_and_b32 v4, 7, v0')
    a('v_lshlrev_b32 v4, 4, v4')
    a('s_lshl_b32 s18, s14, 7')
    a('v_add_u32 v4, s18, v4')
    a('s_movk_i32 s19, 3456')
    a('v_mad_u32_u24 v2, v2, s19, v4')
    a('v_mad_u32_u24 v3, v3, s19, v4')
    a('s_mul_i32 s24, s3, 10240')
    a.wait(lg='all')
    srd(a, 20, 8, 0, D * F * 2)
    for i in range(10):
        a(f's_add_u32 m0, s24, {i*1024}')
        if i < 9:
            a(f's_mov_b32 s25, {i*8*3456}')
            a(f'buffer_load_dwordx4 v2, s[20:23], s25 offen{nt} lds', tag=f'd{i}')
        else:
            a(f'buffer_load_dwordx4 v3, s[20:23], 0 offen{nt} lds', tag=f'd{i}')
    srd(a, 28, 6, W1F_OFF, W1F_SZ)
    srd(a, 32, 10, 0, F * 2)
    a('v_and_b32 v10, 35, v0')
    a('v_bfe_u32 v4, v0, 2, 1')
    a('v_lshl_add_u32 v10, v4, 4, v10')
    a('v_bfe_u32 v4, v0, 3, 2')
    a('v_lshl_add_u32 v10, v4, 2, v10')
    a('v_lshlrev_b32 v10, 1, v10')
    a('buffer_load_ushort v11, v10, s[32:35], s18 offen', tag='b1')
    a('v_bfe_u32 v1, v0, 2, 2')
    a('v_lshrrev_b32 v4, 5, v0')
    a('v_lshl_add_u32 v1, v4, 3, v1')
    a('v_lshlrev_b32 v1, 7, v1')
    a('v_and_b32 v4, 1, v0')
    a('v_lshl_add_u32 v1, v4, 5, v1')
    a('v_bfe_u32 v4, v0, 4, 1')
    a('v_lshl_add_u32 v1, v4, 4, v1')
    a('v_bfe_u32 v4, v0, 1, 1')
    a('v_lshl_add_u32 v1, v4, 3, v1')
    a('v_add_u32 v1, s24, v1')
    a('v_lshlrev_b32 v5, 4, v0')
    a('v_mov_b32 v6, 0x3f803f80')
    a('v_mov_b32 v8, 0')
    a('v_mov_b32 v9, 0')
    a('s_mul_i32 s26, s14, 83968')
    a('s_add_u32 s36, s26, 40960')
    a('s_lshl_b32 s27, s16, 6')
    a('s_add_u32 s26, s26, s27')
    st = (' ' + opt.wf_store) if opt.wf_store else ''
    for k in range(5):
        a.wait(vm=f'd{2*k+1}')
        for h in range(2):
            r = 12 + 8 * k + 4 * h
            a(f'ds_read_b64_tr_b16 v[{r}:{r+1}], v1 offset:{k*2048 + h*64}', tag=f't{k}{h}')
            a(f'ds_read_b64_tr_b16 v[{r+2}:{r+3}], v1 offset:{k*2048 + h*64 + 512}', tag=f't{k}{h}')
        for h in range(2):
            r = 12 + 8 * k + 4 * h
            a.wait(lg=f't{k}{h}')
            a(f's_add_u32 s27, s26, {h*41984 + k*1024}')
            a(f'buffer_store_dwordx4 v[{r}:{r+3}], v5, s[28:31], s27 offen{st}', tag='st')
            for q in range(4):
                a(f'v_dot2c_f32_bf16 v{8+h}, v{r+q}, v6')
    a('v_permlane32_swap_b32 v8, v9')
    a('v_add_f32 v8, v8, v9')
    a('s_lshl_b32 s27, s3, 8')
    a('v_lshlrev_b32 v4, 2, v0')
    a('v_add_u32 v7, s27, v4')
    a('ds_write_b32 v7, v8 offset:40960')
    a.wait(lg='all')
    a('s_barrier')
    a('s_cmp_lg_u32 s3, 0')
    a('s_cbranch_scc1 L1_w1_done')
    for w in range(4):
        a(f'ds_read_b32 v{12+w}, v4 offset:{40960 + w*256}')
    a('v_lshrrev_b32 v1, 5, v0')
    a('v_mul_u32_u24 v1, 41984, v1')
    a('v_and_b32 v2, 31, v0')
    a('v_lshl_add_u32 v1, v2, 4, v1')
    a('s_lshl_b32 s25, s15, 9')
    a('s_add_u32 s27, s36, s25')
    a('s_cmp_eq_u32 s15, 0')
    a('s_cselect_b32 s25, 0xffff, 0')
    a.wait(vm='b1', lg='all')
    a('v_and_b32 v18, s25, v11')
    a('v_add_f32 v12, v12, v13')
    a('v_add_f32 v14, v14, v15')
    a('v_add_f32 v12, v12, v14')
    a('v_cvt_pk_bf16_f32 v16, v12, v12')
    a('v_and_b32 v13, 0xffff0000, v16')
    a('v_sub_f32 v12, v12, v13')
    a('v_cvt_pk_bf16_f32 v17, v12, v12')
    a('v_and_b32 v17, 0xffff, v17')
    a('v_lshl_or_b32 v17, v18, 16, v17')
    a('v_mov_b32 v19, 0')
    a(f'buffer_store_dwordx4 v[16:19], v1, s[28:31], s27 offen{st}')
    a.label('L1_w1_done')
    if opt.stamps:
        a.wait(vm='all'); stamp(a, 1, 0); stamp_flush(a, 2, 0, 6, 3)

def k1_w2(a):
    nt = ' nt' if opt.w_nt else ''
    a('s_sub_u32 s13, s13, 54')
    a('s_lshl_b32 s13, s13, 2')
    a('s_add_u32 s13, s13, s3')
    a('s_lshl_b32 s13, s13, 2')
    a('v_lshrrev_b32 v1, 3, v0')
    a('v_and_b32 v4, 7, v0')
    a('v_lshlrev_b32 v4, 4, v4')
    a('s_movk_i32 s19, 1280')
    a('v_mad_u32_u24 v2, v1, s19, v4')
    a('s_lshl_b32 s24, s3, 14')
    a.wait(lg='all')
    srd(a, 20, 40, 0, D * F * 2)
    for i in range(4):
        a(f's_add_u32 s14, s13, {i}')
        a('s_mul_i32 s15, s14, 6554')
        a('s_lshr_b32 s15, s15, 16')
        a('s_mul_i32 s16, s15, 10')
        a('s_sub_u32 s16, s14, s16')
        a('s_mul_i32 s15, s15, 40960')
        a('s_lshl_b32 s16, s16, 7')
        a('s_add_u32 s15, s15, s16')
        for jx in range(4):
            a(f's_add_u32 m0, s24, {i*4096 + jx*1024}')
            a(f's_add_u32 s25, s15, {jx*8*1280}')
            a(f'buffer_load_dwordx4 v2, s[20:23], s25 offen{nt} lds', tag=f'd{i}')
    srd(a, 28, 6, W2F_OFF, W2F_SZ)
    a('v_bfe_u32 v1, v0, 2, 2')
    a('v_lshrrev_b32 v4, 4, v0')
    a('v_lshl_add_u32 v1, v4, 3, v1')
    a('v_lshlrev_b32 v1, 7, v1')
    a('v_and_b32 v4, 3, v0')
    a('v_lshl_add_u32 v1, v4, 3, v1')
    a('v_add_u32 v1, s24, v1')
    a('v_lshlrev_b32 v5, 4, v0')
    a('s_lshl_b32 s26, s13, 12')
    st = (' ' + opt.wf_store) if opt.wf_store else ''
    for i in range(4):
        a.wait(vm=f'd{i}')
        for T in range(4):
            r = 12 + 16 * i + 4 * T
            a(f'ds_read_b64_tr_b16 v[{r}:{r+1}], v1 offset:{i*4096 + T*32}', tag=f't{i}{T}')
            a(f'ds_read_b64_tr_b16 v[{r+2}:{r+3}], v1 offset:{i*4096 + T*32 + 512}', tag=f't{i}{T}')
        a(f's_add_u32 s27, s26, {i*4096}')
        for T in range(4):
            r = 12 + 16 * i + 4 * T
            a.wait(lg=f't{i}{T}')
            a(f'buffer_store_dwordx4 v[{r}:{r+3}], v5, s[28:31], s27 offen offset:{T*1024}{st}', tag='st')
    if opt.stamps:
        a.wait(vm='all'); stamp(a, 1, 0); stamp_flush(a, 2, 0, 6, 3)

def tagged(fn, tag):
    fn.tag = tag
    return fn

def k1_fft(a):
    nt = ' nt' if opt.x_nt else ''
    VOFF = 4
    ADR = 8
    BF = 24
    ACC = 104
    AF = 168
    M1 = 200
    T = 232
    SG = T; TH = T + 1; KP = T + 2; KN = T + 3; PH0 = T + 4; U = T + 5
    ONES = 244; SQA = 248; SMA = 252
    a('s_sub_u32 s13, s13, 1')
    a('s_and_b32 s14, s13, 3')
    a('s_lshl_b32 s12, s12, 2')
    a('s_add_u32 s12, s12, s14')
    if opt.xaff: perm32(a, 12, 14)
    a('s_lshr_b32 s13, s13, 2')
    a('v_lshrrev_b32 v1, 4, v0')
    a('v_and_b32 v2, 15, v0')
    a('s_lshl_b32 s14, s3, 9')
    a('s_add_u32 s14, s14, s12')
    a('s_mul_i32 s14, s14, 1280')
    a('v_mul_u32_u24 v3, 40960, v1')
    a(f'v_xor_b32 v{U}, v2, v1')
    for i in range(4):
        if i: a(f'v_xor_b32 v{U+1}, {4*i}, v{U}')
        a(f'v_lshl_add_u32 v{VOFF+i}, v{U+1 if i else U}, 4, v3')
        if i: a(f'v_add_u32 v{VOFF+i}, {i*4*40960}, v{VOFF+i}')
    a('s_mul_i32 s15, s3, 20480')
    a('s_lshl_b32 s24, s13, 6')
    a('s_lshl_b32 s25, s3, 4')
    a('s_add_u32 s24, s24, s25')
    a('v_add_u32 v3, s24, v2')
    a(f'v_mov_b32 v{U}, 320')
    a('v_cmp_eq_u32 vcc, 0, v3')
    a(f'v_cndmask_b32 v{U}, v3, v{U}, vcc')
    a(f'v_lshlrev_b32 v{SG}, 31, v{U}')
    a(f'v_or_b32 v{SG}, 1.0, v{SG}')
    a(f'v_cvt_f32_u32 v{TH}, v{U}')
    a(f'v_mul_f32 v{TH}, {f32(1/640)}, v{TH}')
    a(f'v_cos_f32 v{KP}, v{TH}')
    a(f'v_cvt_f32_u32 v{PH0}, v1')
    a(f'v_mul_f32 v{PH0}, {f32(16.0)}, v{PH0}')
    a(f'v_add_f32 v{KP}, v{KP}, v{KP}')
    a(f'v_sub_f32 v{KN}, 0, v{KP}')
    def bgen(sc):
        a(f'v_add_f32 v{U+4}, {f32(64.0*sc)}, v{PH0}')
        a(f'v_mul_f32 v{U+4}, v{U+4}, v{TH}')
        a(f'v_fract_f32 v{U+4}, v{U+4}')
        a(f'v_add_f32 v{U+5}, v{U+4}, v{TH}')
        a(f'v_cos_f32 v{U}, v{U+4}')
        a(f'v_cos_f32 v{U+1}, v{U+5}')
        a(f'v_sin_f32 v{U+2}, v{U+4}')
        a(f'v_sin_f32 v{U+3}, v{U+5}')
        for p in range(8):
            ks = 2 * sc + (p >> 2); q = p & 3
            sa = '-' if p & 1 else ''
            sb = '' if p & 1 else '-'
            if p:
                a(f'v_fmac_f32 v{U}, v{KN}, v{U+1}')
                a(f'v_fmac_f32 v{U+2}, v{KN}, v{U+3}')
                a(f'v_fmac_f32 v{U+1}, v{KP}, v{U}')
                a(f'v_fmac_f32 v{U+3}, v{KP}, v{U+2}')
            a(f'v_cvt_pk_bf16_f32 v{BF+ks*4+q}, {sa}v{U}, {sa}v{U+1}')
            a(f'v_cvt_pk_bf16_f32 v{BF+40+ks*4+q}, {sb}v{U+2}, {sb}v{U+3}')
    for sc in range(opt.k1_pre): bgen(sc)
    a.wait(lg='all')
    srd(a, 16, 4, 0, S * D * 2)
    def dma(c, i):
        a(f's_add_u32 m0, s15, {c*4096 + i*1024 - 256*c}')
        a(f'buffer_load_dwordx4 v{VOFF+i}, s[16:19], s14 offen offset:{256*c}{nt} lds', tag=f'x{c}')
        if (c, i) == (1, 3): stamp(a, 6, 0)
        if (c, i) == (3, 1): stamp(a, 7, 0)
    late = [False]
    a.q = [(tagged(lambda c=c, i=i: dma(c, i), f'x{c}'), (None if 4*c+i < opt.k1_first else (lambda: late[0])), 1) for c in range(5) for i in range(4)]
    a.next_t = a.t; a.interval = opt.k1_int
    a.pump(force=4)
    a.next_t = a.t
    a.pumping = True
    stamp(a, 1, 0)
    for sc in range(opt.k1_pre, 5): bgen(sc)
    a(f'v_lshlrev_b32 v{U}, 1, v1')
    a(f'v_xor_b32 v{U}, v{U}, v2')
    a(f'v_lshlrev_b32 v{U}, 4, v{U}')
    a(f'v_lshl_add_u32 v{U}, v2, 8, v{U}')
    for sl in range(4):
        a(f's_add_u32 s24, s3, {sl}')
        a('s_and_b32 s24, s24, 3')
        a(f's_lshl_b32 s{28+sl}, s24, 9')
        a(f's_lshl_b32 s{32+sl}, s24, 6')
        a('s_mul_i32 s24, s24, 20480')
        a(f'v_add_u32 v{ADR+4*sl}, s24, v{U}')
        for k in range(1, 4):
            a(f'v_xor_b32 v{ADR+4*sl+k}, {(8*(k>>1) + (k&1))*16}, v{ADR+4*sl}')
    a('s_mul_i32 s24, s12, 1280')
    a('v_lshlrev_b32 v3, 2, v3')
    a('v_add_u32 v3, s24, v3')
    a('s_mov_b32 s24, 327680')
    a('v_mad_u32_u24 v3, v1, s24, v3')
    SF = AF
    T1 = AF + 8
    W = AF + 12
    a(f'v_lshlrev_b32 v{W}, 7, v1')
    a(f'v_add_u32 v{W}, s12, v{W}')
    for sl in range(2):
        a(f'v_add_u32 v{W+1}, s{28+sl}, v{W}')
        a(f'v_cvt_f32_u32 v{W+1}, v{W+1}')
        a(f'v_mul_f32 v{SF+4*sl}, {f32(1/2048)}, v{W+1}')
        for i in range(1, 4):
            a(f'v_add_f32 v{SF+4*sl+i}, {f32(32*i/2048)}, v{SF+4*sl}')
    a(f'v_lshlrev_b32 v{W}, 1, v2')
    a(f'v_cvt_f32_u32 v{T1}, v{W}')
    a(f'v_add_f32 v{T1+1}, {f32(32.0)}, v{T1}')
    a(f'v_add_f32 v{T1+2}, 1.0, v{T1}')
    a(f'v_add_f32 v{T1+3}, {f32(33.0)}, v{T1}')
    for tau in range(4):
        for q in range(4):
            a(f'v_mul_f32 v{W}, v{T1+tau}, v{SF+2*q}')
            a(f'v_mul_f32 v{W+1}, v{T1+tau}, v{SF+2*q+1}')
            a(f'v_cos_f32 v{W+2}, v{W}')
            a(f'v_cos_f32 v{W+3}, v{W+1}')
            a(f'v_sin_f32 v{W+4}, v{W}')
            a(f'v_sin_f32 v{W+5}, v{W+1}')
            a(f'v_cvt_pk_bf16_f32 v{M1+tau*8+q}, v{W+2}, v{W+3}')
            a(f'v_cvt_pk_bf16_f32 v{M1+tau*8+4+q}, v{W+4}, v{W+5}')
    for i in range(4): a(f'v_mov_b32 v{ONES+i}, 0x3f803f80')
    SW = TH; SR = KP
    a(f'v_and_b32 v{U+1}, 1, v2')
    a(f'v_cmp_ne_u32 s[36:37], 0, v{U+1}')
    a(f'v_and_b32 v{U+1}, 2, v2')
    a(f'v_cmp_ne_u32 s[38:39], 0, v{U+1}')
    a(f'v_lshrrev_b32 v{U+1}, 2, v2')
    a(f'v_cmp_eq_u32 vcc, v{U+1}, v1')
    a(f'v_lshlrev_b32 v{U+1}, 2, v2')
    a(f'v_add_u32 v{U+1}, s32, v{U+1}')
    a(f'v_mov_b32 v{U+2}, 256')
    a(f'v_cndmask_b32 v{U+1}, v{U+2}, v{U+1}, vcc')
    a(f'v_add_u32 v{SW}, 81920, v{U+1}')
    a(f'v_lshlrev_b32 v{U+1}, 4, v1')
    a(f'v_add_u32 v{U+1}, 81920, v{U+1}')
    for sl in range(4):
        a(f'v_add_u32 v{SR+sl}, s{32+sl}, v{U+1}')
    a(f's_add_u32 s20, s6, {hex(Z_OFF)}')
    a('s_addc_u32 s21, s7, 0')
    stamp(a, 2, 0)
    seq = [(ks, sl) for ks in range(16) for sl in range(4)] + [(ks, sl) for sl in (0, 2, 1, 3) for ks in range(16, 20)]
    PF = 5
    avail = [-1]
    def rd(n):
        ks, sl = seq[n]
        c, k = ks >> 2, ks & 3
        if c > avail[0]:
            a.wait(vm=f'x{c}'); a('s_barrier'); avail[0] = c
            if c == 0:
                late[0] = True; a.next_t = a.t; a.pump(force=4); a.next_t = a.t
            if c in (0, 2, 4): stamp(a, 8 + c // 2, 0)
        r = AF + (n & 7) * 4
        a(f'ds_read_b128 v[{r}:{r+3}], v{ADR+4*sl+k} offset:{c*4096}', tag=f'a{n}')
    X = U + 1
    RS = BF
    CF = BF + 40
    fill = []
    def F(txt): fill.append(lambda: a(txt))
    def stats():
        for base, d in ((SMA, X), (SQA, X + 1)):
            F(f'v_cndmask_b32 v{d}, v{base}, v{base+1}, s[36:37]')
            F(f'v_cndmask_b32 v{X+2}, v{base+2}, v{base+3}, s[36:37]')
            F(f'v_cndmask_b32 v{d}, v{d}, v{X+2}, s[38:39]')
        SUM, SQ = X, X + 1
        F(f'v_mul_f32 v{SUM}, {f32(1/640)}, v{SUM}')
        F(f'v_mul_f32 v{SQ}, {f32(1/640)}, v{SQ}')
        F(f'v_fma_f32 v{SQ}, -v{SUM}, v{SUM}, v{SQ}')
        F(f'v_max_f32 v{SQ}, 0, v{SQ}')
        if opt.mimic1:
            F(f'v_cvt_pk_bf16_f32 v{SQ}, v{SQ}, v{SQ}')
            F(f'v_and_b32 v{SQ}, 0xffff0000, v{SQ}')
            F(f'v_add_f32 v{SQ}, {f32(1e-5)}, v{SQ}')
            F(f'v_cvt_pk_bf16_f32 v{SQ}, v{SQ}, v{SQ}')
            F(f'v_and_b32 v{SQ}, 0xffff0000, v{SQ}')
            F(f'v_sqrt_f32 v{SQ}, v{SQ}')
            F(f'v_cvt_pk_bf16_f32 v{SQ}, v{SQ}, v{SQ}')
            F(f'v_and_b32 v{SQ}, 0xffff0000, v{SQ}')
            F(f'v_rcp_f32 v{SQ}, v{SQ}')
        else:
            F(f'v_add_f32 v{SQ}, {f32(1e-5)}, v{SQ}')
            F(f'v_rsq_f32 v{SQ}, v{SQ}')
        fill.append(lambda: a(f'ds_write_b32 v{SW}, v{SQ}', tag='sw'))
    def merge(sl):
        for t in range(2):
            for r in range(4):
                i = t * 16 + sl * 4 + r
                F(f'v_fmac_f32 v{ACC+i}, v{SG}, v{ACC+32+i}')
    def rsread():
        def f():
            a.wait(lg='sw'); a('s_barrier')
            for sl in (0, 2, 1, 3):
                a(f'ds_read_b128 v[{RS+4*sl}:{RS+4*sl+3}], v{SR+sl}', tag=f'rs{sl}')
        fill.append(f)
    def bfly(sl):
        fill.append(lambda: a.wait(lg=[f'rs{sl}', f'rs{sl+2}']))
        for t in range(2):
            P = ACC + 32 + t * 16 + sl * 4
            for r in range(4):
                F(f'v_mul_f32 v{P+r}, v{RS+4*sl+r}, v{ACC + t*16 + sl*4 + r}')
            for r in range(4):
                lo = ACC + t * 16 + sl * 4 + r; hi = lo + 8
                F(f'v_fma_f32 v{lo}, v{RS+4*sl+8+r}, v{hi}, v{P+r}')
                F(f'v_fma_f32 v{hi}, -v{RS+4*sl+8+r}, v{hi}, v{P+r}')
            for par in range(2):
                for h in range(2):
                    src = ACC + t * 16 + (sl + 2 * par) * 4 + 2 * h
                    F(f'v_cvt_pk_bf16_f32 v{CF+par*12+t*4+sl*2+h}, v{src}, v{src+1}')
                    if t == 0:
                        F(f'v_cvt_pk_bf16_f32 v{CF+par*12+8+sl*2+h}, -v{src}, -v{src+1}')
    for n in range(PF): rd(n)
    for n, (ks, sl) in enumerate(seq):
        if n + PF < len(seq): rd(n + PF)
        if n == 69: stats()
        if n == 73: merge(0); rsread(); merge(2)
        if n == 77: bfly(0); merge(1)
        half, kb = ks // 10, ks % 10
        r = AF + (n & 7) * 4
        a.wait(lg=f'a{n}')
        if sl == 0:
            for acc, b in ((SQA, r), (SMA, ONES)):
                cin = '0' if ks == 0 else f'v[{acc}:{acc+3}]'
                a(f'v_mfma_f32_16x16x32_bf16 v[{acc}:{acc+3}], v[{r}:{r+3}], v[{b}:{b+3}], {cin}')
        for t in range(2):
            acc = ACC + half * 32 + t * 16 + sl * 4
            cin = '0' if kb == 0 else f'v[{acc}:{acc+3}]'
            b = BF + t * 40 + kb * 4
            a(f'v_mfma_f32_16x16x32_bf16 v[{acc}:{acc+3}], v[{r}:{r+3}], v[{b}:{b+3}], {cin}')
            for _ in range(3):
                if fill: fill.pop(0)()
    a.pumping = False
    stamp(a, 3, 0)
    merge(3); bfly(1)
    while fill: fill.pop(0)()
    ZD = AF
    st = (' ' + opt.z_store) if opt.z_store else ''
    def zstore(tau):
        zr = ZD + tau * 8; zi = zr + 4
        for r in range(4):
            def f(r=r):
                a(f's_add_u32 s22, s20, {(32*(tau&1) + 2*r + (tau>>1))*40960}')
                a('s_addc_u32 s23, s21, 0')
                a(f'v_cvt_pk_bf16_f32 v{ACC+tau*4+r}, v{zr+r}, v{zi+r}')
                a(f'global_store_dword v3, v{ACC+tau*4+r}, s[22:23]{st}')
            fill.append(f)
    for tau in range(4):
        par = tau >> 1
        C = M1 + tau * 8; Sx = C + 4
        fa = CF + par * 12; fb = fa + 4; fn = fa + 8
        zr = ZD + tau * 8; zi = zr + 4
        if tau >= 2: zstore(tau - 2)
        for m in (f'v[{zr}:{zr+3}], v[{C}:{C+3}], v[{fa}:{fa+3}], 0', f'v[{zi}:{zi+3}], v[{C}:{C+3}], v[{fb}:{fb+3}], 0',
                  f'v[{zr}:{zr+3}], v[{Sx}:{Sx+3}], v[{fb}:{fb+3}], v[{zr}:{zr+3}]', f'v[{zi}:{zi+3}], v[{Sx}:{Sx+3}], v[{fn}:{fn+3}], v[{zi}:{zi+3}]'):
            a('v_mfma_f32_16x16x32_bf16 ' + m)
            if fill: fill.pop(0)()
    zstore(2); zstore(3)
    while fill: fill.pop(0)()
    if opt.stamps:
        stamp(a, 4, 0); a.wait(vm='all'); stamp(a, 5, 0); stamp_flush(a, 11, 0, 6, 3)

def kd(name, vgpr, acc, sgpr=102):
    return f""".p2align 6
.amdhsa_kernel {name}
  .amdhsa_next_free_vgpr {vgpr}
  .amdhsa_next_free_sgpr {sgpr}
  .amdhsa_accum_offset {acc}
  .amdhsa_group_segment_fixed_size 0
  .amdhsa_kernarg_size 104
  .amdhsa_user_sgpr_count 2
  .amdhsa_user_sgpr_kernarg_segment_ptr 1
  .amdhsa_system_sgpr_workgroup_id_x 1
  .amdhsa_float_denorm_mode_32 3
.end_amdhsa_kernel
"""

def build(with_k2=True):
    from gen2 import k2, K2_LDS
    hdr = open('cdna_kernels/' + NAME + '.s.ref').read().split('; Override launch')[0]
    out = hdr
    out += f'; @launch kernel=k1_kernel grid=(256,1,1) block=(256,1,1) lds={K1_LDS}\n'
    if with_k2:
        out += f'; @launch kernel=k2_kernel grid=(256,1,1) block=(256,1,1) lds={K2_LDS}\n'
    out += '.amdgcn_target "amdgcn-amd-amdhsa--gfx950"\n.text\n'
    a = Asm()
    a.raw('.globl k1_kernel\n.p2align 8\n.type k1_kernel,@function')
    k1(a)
    if with_k2:
        a.newpath()
        a.raw('.globl k2_kernel\n.p2align 8\n.type k2_kernel,@function')
        k2(a)
    a.raw('L_code_end:')
    out += a.text()
    out += '.section .rodata,"a"\n'
    out += kd('k1_kernel', 256, 256)
    if with_k2:
        out += kd('k2_kernel', 512, 256)
    return out

if __name__ == '__main__':
    import gen
    outp = sys.argv[1]
    for kv in sys.argv[2:]:
        k, v = kv.split('=')
        cur = getattr(gen.opt, k)
        if isinstance(cur, bool): v = v in ('1', 'True', 'true')
        elif isinstance(cur, int): v = int(v)
        setattr(gen.opt, k, v)
    open(outp, 'w').write(gen.build(with_k2=not getattr(gen.opt, 'only1', False)))
```
